```python
import torch

def _softmax(x, axis=-1):
    return torch.softmax(x, dim=axis)
def _gelu(x):
    return torch.nn.functional.gelu(x, approximate="tanh")
def _silu(x):
    return torch.nn.functional.silu(x)
def _sigmoid(x):
    return torch.sigmoid(x)
def _layernorm(x, axis=-1, eps=1e-5):
    m = x.mean(dim=axis, keepdim=True)
    v = x.var(dim=axis, keepdim=True, unbiased=False)
    return (x - m) / torch.sqrt(v + eps)
def _scatter_add(tgt, idx, src, axis=0):
    return tgt.clone().index_add_(axis, idx, src)
def _segment_sum(src, seg, n):
    out = torch.zeros((n,) + src.shape[1:], dtype=src.dtype)
    return out.index_add_(0, seg, src)
def _pad(x, pw):
    flat = tuple(v for pair in reversed(pw) for v in pair)
    return torch.nn.functional.pad(x, flat)

kernel_name = 'standalone__sliding_block__prompt'

def setup_inputs():

    _w = (lambda a: (lambda t: t.to(torch.bfloat16) if t.is_floating_point() else t)(torch.as_tensor(a)))
    B, S, D = 1, 2048, 1024
    return {
        "x": _w((lambda *s: torch.randn(*s, dtype=torch.bfloat16) * 0.2)(B, S, D)),
        "wqkv": _w((lambda *s: torch.randn(*s, dtype=torch.bfloat16) * 0.2)(D, 3 * D)),
        "wo": _w((lambda *s: torch.randn(*s, dtype=torch.bfloat16) * 0.05)(D, D)),
    }

def reference(x, wqkv, wo):
    B, S, D = x.shape
    H = 32; Dh = D // H; W = 256
    qkv = (lambda x, *d: x.permute(*d))((x @ wqkv).reshape(B, S, 3, H, Dh), 2, 0, 3, 1, 4)
    q, k, v = qkv[0], qkv[1], qkv[2]
    scores = torch.einsum("bhqd,bhkd->bhqk", q, k) * (Dh ** -0.5)
    idx = torch.arange(S)
    mask = (idx[:, None] - idx[None, :] >= 0) & (idx[:, None] - idx[None, :] < W)
    scores = torch.where(mask[None, None], scores, -1e9)
    p = _softmax(scores, axis=-1)
    o = torch.einsum("bhqk,bhkd->bhqd", p, v)
    return (lambda x, *d: x.permute(*d))(o, 0, 2, 1, 3).reshape(B, S, D) @ wo
```

```python
class Asm:
    def __init__(self):
        self.L = []
        self.uid = 0
    def __call__(self, s):
        self.L.append("    " + s)
    def label(self, s):
        self.L.append(s + ":")
    def raw(self, s):
        self.L.append(s)
    def c(self, s):
        self.L.append("    ; " + s)
    def newlabel(self, p="L"):
        self.uid += 1
        return f"{p}_{self.uid}"
    def text(self):
        return "\n".join(self.L) + "\n"

def vr(b, n=1):
    return f"v{b}" if n == 1 else f"v[{b}:{b+n-1}]"
def sr(b, n=1):
    return f"s{b}" if n == 1 else f"s[{b}:{b+n-1}]"
def ar(b, n=1):
    return f"a{b}" if n == 1 else f"a[{b}:{b+n-1}]"

HEADER_COMMENT = """; Kernarg layout for this problem (48 bytes, ptrs only, base s[0:1]):
"""

def kernel_begin(A, name):
    A.raw(f".globl {name}")
    A.raw(".p2align 8")
    A.raw(f".type {name},@function")
    A.raw(f"{name}:")

def kernel_desc(A, name, vgpr, sgpr, accum):
    A.raw(".p2align 6")
    A.raw(f".amdhsa_kernel {name}")
    A.raw(f"  .amdhsa_next_free_vgpr {vgpr}")
    A.raw(f"  .amdhsa_next_free_sgpr {sgpr}")
    A.raw(f"  .amdhsa_accum_offset {accum}")
    A.raw("  .amdhsa_group_segment_fixed_size 0")
    A.raw("  .amdhsa_kernarg_size 48")
    A.raw("  .amdhsa_user_sgpr_count 2")
    A.raw("  .amdhsa_user_sgpr_kernarg_segment_ptr 1")
    A.raw("  .amdhsa_system_sgpr_workgroup_id_x 1")
    A.raw(".end_amdhsa_kernel")
```

```python
import sys
from asmlib import *

Q_BASE = 0
KV_BASE = 4 << 20
O_BASE = 12 << 20
WS_BYTES = 268435456
QSCALE = 0x3e8293ee
NEGBIG = 0xf149f2ca

SLOT = 40960

def prologue(A, nwg=256):
    A(f"s_cmp_ge_u32 s2, {nwg}")
    A("s_cbranch_scc1 " + A.endl)
    A("s_load_dwordx8 s[4:11], s[0:1], 0")
    A("s_load_dwordx4 s[12:15], s[0:1], 32")
    A("s_and_b32 s43, s2, 7")
    A("s_lshr_b32 s44, s2, 3")
    A("s_and_b32 s45, s43, 1")
    A("s_lshl_b32 s45, s45, 3")
    A("s_and_b32 s46, s44, 7")
    A("s_add_u32 s40, s45, s46")
    A("s_lshr_b32 s45, s43, 1")
    A("s_lshl_b32 s45, s45, 2")
    A("s_lshr_b32 s46, s44, 3")
    A("s_add_u32 s41, s45, s46")
    A("v_lshrrev_b32 v1, 6, v0")
    A("v_and_b32 v2, 63, v0")
    A("v_readfirstlane_b32 s42, v1")
    A("s_waitcnt lgkmcnt(0)")
    for base, ptr, n in ((16, 4, 0x400000), (20, 6, 0x600000), (24, 8, 0x200000), (28, 10, 0x400000), (32, 14, WS_BYTES), (36, 12, 256)):
        A(f"s_mov_b32 s{base}, s{ptr}")
        A(f"s_mov_b32 s{base+1}, s{ptr+1}")
        A(f"s_mov_b32 s{base+2}, {n:#x}")
        A(f"s_mov_b32 s{base+3}, 0x20000")

def mfma(A, d, a, b, c=None):
    cs = vr(d, 16) if c is None else (c if isinstance(c, str) else vr(c, 16))
    A(f"v_mfma_f32_32x32x16_bf16 {vr(d,16)}, {vr(a,4)}, {vr(b,4)}, {cs}")

ACC = 16
FR = [112, 132]
XA0 = 152
WA0 = 156
XA = 160
WA = 164

def qkv_loader(A):
    A("s_sub_u32 s43, s42, 4")
    A("v_lshrrev_b32 v3, 3, v2")
    A("v_and_b32 v4, 7, v2")
    for i in range(10):
        vo = 10 + i
        if i < 4:
            A(f"s_add_u32 s44, s43, {4*i}")
            A("s_lshl_b32 s44, s44, 3")
            A("v_add_u32 v5, s44, v3")
            A("v_lshrrev_b32 v6, 1, v5")
            A("v_and_b32 v6, 7, v6")
            A("v_xor_b32 v6, v6, v4")
            A("s_lshl_b32 s44, s40, 7")
            A("v_add_u32 v5, s44, v5")
            A("v_lshlrev_b32 v5, 11, v5")
            A(f"v_lshl_add_u32 v{vo}, v6, 4, v5")
        else:
            q = 4 * (i - 4)
            part = q // 8
            A(f"s_add_u32 s44, s43, {q%8}")
            A("s_lshl_b32 s44, s44, 3")
            A("v_add_u32 v5, s44, v3")
            A("v_lshrrev_b32 v6, 1, v5")
            A("v_and_b32 v6, 1, v6")
            A("v_lshlrev_b32 v6, 2, v6")
            A("v_xor_b32 v6, v6, v4")
            A("v_mul_u32_u24 v5, 0x1800, v5")
            A("s_lshl_b32 s44, s41, 7")
            A(f"s_add_u32 s44, s44, {part*2048}")
            A("v_add_u32 v5, s44, v5")
            A(f"v_lshl_add_u32 v{vo}, v6, 4, v5")
    A("s_lshl_b32 s46, s43, 10")
    A("s_mov_b32 s47, 0")
    A("s_mov_b32 s48, 0")
    def issue(slot_sgpr_or_const):
        for i in range(10):
            if isinstance(slot_sgpr_or_const, int):
                A(f"s_add_u32 m0, s46, {slot_sgpr_or_const + i*4096}")
            else:
                A(f"s_add_u32 m0, {slot_sgpr_or_const}, {i*4096}")
            A("s_nop 0")
            if i < 4:
                A(f"buffer_load_dwordx4 v{10+i}, s[16:19], s47 offen lds")
            else:
                A(f"buffer_load_dwordx4 v{10+i}, s[20:23], s48 offen lds")
        A("s_add_u32 s47, s47, 128")
        A("s_add_u32 s48, s48, 0x60000")
    issue(0); issue(SLOT); issue(2 * SLOT)
    A("s_waitcnt vmcnt(20)")
    A("s_barrier")
    A("s_mov_b32 s49, s46")
    A("s_mov_b32 s50, 13")
    lp = A.newlabel("Lld")
    A.label(lp)
    A("s_waitcnt vmcnt(10)")
    A("s_barrier")
    issue("s49")
    A(f"s_add_u32 s49, s49, {SLOT}")
    A(f"s_cmp_ge_u32 s49, {3*SLOT}")
    A(f"s_cselect_b32 s49, s46, s49")
    A("s_sub_u32 s50, s50, 1")
    A("s_cmp_lg_u32 s50, 0")
    A(f"s_cbranch_scc1 {lp}")
    A("s_waitcnt vmcnt(10)")
    A("s_barrier")
    A("s_waitcnt vmcnt(0)")
    A("s_barrier")
    A("s_barrier")

def qkv_compute_setup(A):
    A("s_and_b32 s44, s42, 1")
    A("s_lshr_b32 s45, s42, 1")
    A("v_and_b32 v3, 31, v2")
    A("v_lshrrev_b32 v4, 5, v2")
    A("v_lshrrev_b32 v5, 1, v3")
    A("v_and_b32 v5, 7, v5")
    A("s_lshl_b32 s46, s45, 6")
    A("v_add_u32 v6, s46, v3")
    A("v_lshlrev_b32 v6, 7, v6")
    for ks in range(4):
        A(f"v_add_u32 v7, {2*ks}, v4")
        A("v_xor_b32 v7, v7, v5")
        A(f"v_lshl_add_u32 v{XA0+ks}, v7, 4, v6")
    A("v_lshrrev_b32 v3, 4, v2")
    A("v_bfe_u32 v4, v2, 2, 2")
    A("v_and_b32 v5, 3, v2")
    A("v_lshrrev_b32 v6, 1, v3")
    A("v_lshl_add_u32 v6, v6, 3, v4")
    A("v_and_b32 v7, 1, v3")
    A("v_lshlrev_b32 v7, 1, v7")
    A("v_lshrrev_b32 v8, 1, v5")
    A("v_add_u32 v7, v7, v8")
    A("s_lshl_b32 s46, s44, 2")
    A("v_add_u32 v7, s46, v7")
    A("v_lshrrev_b32 v8, 1, v4")
    A("v_lshlrev_b32 v8, 2, v8")
    A("v_xor_b32 v7, v7, v8")
    A("v_lshlrev_b32 v6, 7, v6")
    A("v_lshl_add_u32 v6, v7, 4, v6")
    A("v_and_b32 v5, 1, v5")
    A("v_lshl_add_u32 v6, v5, 3, v6")
    A(f"v_add_u32 v{WA0}, 0x4000, v6")
    for i in range(96):
        A(f"v_mov_b32 v{ACC+i}, 0")
    for i in range(20):
        A(f"v_mov_b32 v{FR[1]+i}, 0")
    for i in range(5):
        A(f"v_mov_b32 v{XA+i}, v{XA0+i}")

def reads(ks, st):
    f = FR[st]
    return [
        f"ds_read_b128 {vr(f,4)}, v{XA+ks}",
        f"ds_read_b64_tr_b16 {vr(f+8,2)}, v{WA} offset:{ks*2048}",
        f"ds_read_b64_tr_b16 {vr(f+10,2)}, v{WA} offset:{ks*2048+512}",
        f"ds_read_b128 {vr(f+4,4)}, v{XA+ks} offset:4096",
        f"ds_read_b64_tr_b16 {vr(f+12,2)}, v{WA} offset:{8192+ks*2048}",
        f"ds_read_b64_tr_b16 {vr(f+14,2)}, v{WA} offset:{8192+ks*2048+512}",
        f"ds_read_b64_tr_b16 {vr(f+16,2)}, v{WA} offset:{16384+ks*2048}",
        f"ds_read_b64_tr_b16 {vr(f+18,2)}, v{WA} offset:{16384+ks*2048+512}",
    ]

def mf(A, i, st):
    f = FR[st]
    X0, X1, Wq, Wk, Wv = f, f + 4, f + 8, f + 12, f + 16
    if i == 0: mfma(A, ACC + 0, Wq, X0)
    if i == 1: mfma(A, ACC + 16, Wq, X1)
    if i == 2: mfma(A, ACC + 32, Wk, X0)
    if i == 3: mfma(A, ACC + 48, Wk, X1)
    if i == 4: mfma(A, ACC + 64, X0, Wv)
    if i == 5: mfma(A, ACC + 80, X1, Wv)

def qkv_compute(A):
    A("s_mov_b32 s47, 0")
    A("s_mov_b32 s50, 16")
    lp = A.newlabel("Lmm")
    A.label(lp)
    A("s_waitcnt lgkmcnt(0)")
    mf(A, 0, 1); mf(A, 1, 1)
    A("s_barrier")
    R = reads(0, 0)
    for i in range(2, 6):
        mf(A, i, 1)
        A(R[2*(i-2)]); A(R[2*(i-2)+1])
    for ks in range(3):
        st = ks % 2
        R = reads(ks + 1, 1 - st)
        A("s_waitcnt lgkmcnt(5)")
        mf(A, 0, st); A(R[0]); A(R[1])
        A("s_waitcnt lgkmcnt(6)")
        mf(A, 1, st); A(R[2]); A(R[3])
        A("s_waitcnt lgkmcnt(6)")
        mf(A, 2, st); A(R[4]); A(R[5])
        mf(A, 3, st); A(R[6]); A(R[7])
        A("s_waitcnt lgkmcnt(8)")
        mf(A, 4, st)
        if ks == 2:
            A(f"s_add_u32 s47, s47, {SLOT}")
            A(f"s_cmp_ge_u32 s47, {3*SLOT}")
            A("s_cselect_b32 s47, 0, s47")
            for i in range(5):
                A(f"v_add_u32 v{XA+i}, s47, v{XA0+i}")
        mf(A, 5, st)
    A("s_sub_u32 s50, s50, 1")
    A("s_cmp_lg_u32 s50, 0")
    A(f"s_cbranch_scc1 {lp}")
    A("s_waitcnt lgkmcnt(0)")
    A("s_barrier")
    for i in range(6):
        mf(A, i, 1)

def pack_tile(A, dst, src):
    for i in range(8):
        A(f"v_cvt_pk_bf16_f32 v{dst+i}, v{src+2*i}, v{src+2*i+1}")

def kernel_qkv(A):
    name = "qkv_kernel"
    kernel_begin(A, name)
    A.endl = "L_end_qkv"
    prologue(A)
    A("s_cmp_ge_u32 s42, 4")
    A("s_cbranch_scc1 L_qkv_loader")
    qkv_compute_setup(A)
    qkv_compute(A)
    A("s_nop 15")
    A("s_lshl_b32 s46, s41, 1")
    A("s_add_u32 s46, s46, s44")
    A("s_lshl_b32 s47, s40, 2")
    A("s_lshl_b32 s48, s45, 1")
    A("s_add_u32 s47, s47, s48")
    A("s_lshl_b32 s48, s46, 6")
    A("s_add_u32 s48, s48, s47")
    A("s_lshl_b32 s49, s48, 11")
    A("s_lshl_b32 s48, s48, 12")
    A(f"s_add_u32 s48, s48, {KV_BASE}")
    A("v_lshlrev_b32 v3, 4, v2")
    P = 112
    pack_tile(A, P + 0, ACC + 32); pack_tile(A, P + 8, ACC + 64)
    pack_tile(A, P + 16, ACC + 48); pack_tile(A, P + 24, ACC + 80)
    for i in range(4):
        A(f"buffer_store_dwordx4 {vr(P+4*i,4)}, v3, s[32:35], s48 offen offset:{1024*i}")
    A("s_add_u32 s48, s48, 4096")
    for i in range(4):
        A(f"buffer_store_dwordx4 {vr(P+16+4*i,4)}, v3, s[32:35], s48 offen offset:{1024*i}")
    A(f"s_mov_b32 s50, {QSCALE:#x}")
    for i in range(32):
        A(f"v_mul_f32 v{ACC+i}, s50, v{ACC+i}")
    pack_tile(A, P + 32, ACC); pack_tile(A, P + 40, ACC + 16)
    for i in range(4):
        A(f"buffer_store_dwordx4 {vr(P+32+4*i,4)}, v3, s[32:35], s49 offen offset:{1024*i}")
    A("s_branch L_end_qkv")
    A.label("L_qkv_loader")
    qkv_loader(A)
    A.label("L_end_qkv")
    A("s_endpgm")
    return name

def attn_slow(A, QF, s_qb, s_kvb, OUT):
    KF, VF, S, PF, O = 32, 40, 48, 64, 80
    M, Lr, T, D = 96, 97, 98, 100
    A(f"s_sub_u32 s52, {s_qb}, 8")
    A("s_max_i32 s52, s52, 0")
    A(f"v_mov_b32 v{M}, {NEGBIG:#x}")
    A(f"v_mov_b32 v{T+1}, {NEGBIG:#x}")
    A(f"v_mov_b32 v{Lr}, 0")
    for i in range(16):
        A(f"v_mov_b32 v{O+i}, 0")
    A("s_movk_i32 s57, 256")
    for ps in range(2):
        A("s_mov_b32 s53, s52")
        lp = A.newlabel("Lat")
        A.label(lp)
        A("s_lshl_b32 s54, s53, 12")
        A(f"s_add_u32 s54, s54, {s_kvb}")
        A(f"buffer_load_dwordx4 {vr(KF,4)}, v3, s[32:35], s54 offen sc1")
        A(f"buffer_load_dwordx4 {vr(KF+4,4)}, v3, s[32:35], s54 offen offset:1024 sc1")
        if ps:
            A(f"buffer_load_dwordx4 {vr(VF,4)}, v3, s[32:35], s54 offen offset:2048 sc1")
            A(f"buffer_load_dwordx4 {vr(VF+4,4)}, v3, s[32:35], s54 offen offset:3072 sc1")
        A(f"s_sub_u32 s55, {s_qb}, s53")
        A("s_lshl_b32 s55, s55, 5")
        A(f"v_add_u32 v{D}, s55, v4")
        A("s_waitcnt vmcnt(0)")
        mfma(A, S, KF, QF, "0")
        mfma(A, S, KF + 4, QF + 4)
        A("s_nop 15")
        for r in range(16):
            ko = 8 * (r // 4) + r % 4
            A(f"v_subrev_u32 v{T}, {ko}, v{D}")
            A(f"v_cmp_gt_u32 vcc, s57, v{T}")
            A("s_nop 1")
            A(f"v_cndmask_b32 v{S+r}, v{T+1}, v{S+r}, vcc")
            if ps == 0:
                A(f"v_max_f32 v{M}, v{M}, v{S+r}")
            else:
                A(f"v_sub_f32 v{S+r}, v{S+r}, v{M}")
                A(f"v_exp_f32 v{S+r}, v{S+r}")
                A("s_nop 0")
                A(f"v_add_f32 v{Lr}, v{Lr}, v{S+r}")
        if ps:
            pack_tile(A, PF, S)
            A("s_nop 1")
            mfma(A, O, VF, PF)
            mfma(A, O, VF + 4, PF + 4)
        A("s_add_u32 s53, s53, 1")
        A(f"s_cmp_le_u32 s53, {s_qb}")
        A(f"s_cbranch_scc1 {lp}")
        R = M if ps == 0 else Lr
        A(f"v_mov_b32 v{T}, v{R}")
        A("s_nop 1")
        A(f"v_permlane32_swap_b32 v{T}, v{R}")
        A("s_nop 1")
        if ps == 0:
            A(f"v_max_f32 v{M}, v{M}, v{T}")
        else:
            A(f"v_add_f32 v{Lr}, v{Lr}, v{T}")
    A(f"v_rcp_f32 v{Lr}, v{Lr}")
    A("s_nop 15")
    for i in range(16):
        A(f"v_mul_f32 v{O+i}, v{O+i}, v{Lr}")
    pack_tile(A, OUT, O)

def kernel_attn(A):
    name = "attn_kernel"
    kernel_begin(A, name)
    A.endl = "L_end_attn"
    prologue(A)
    A("s_and_b32 s44, s42, 1")
    A("s_lshr_b32 s45, s42, 1")
    A("s_lshl_b32 s46, s41, 1")
    A("s_add_u32 s46, s46, s44")
    A("s_lshl_b32 s47, s40, 2")
    A("s_lshl_b32 s48, s45, 1")
    A("s_add_u32 s47, s47, s48")
    A("s_lshl_b32 s49, s46, 18")
    A(f"s_add_u32 s49, s49, {KV_BASE}")
    A("v_lshlrev_b32 v3, 4, v2")
    A("v_and_b32 v4, 31, v2")
    A("v_lshrrev_b32 v5, 5, v2")
    A("v_lshlrev_b32 v5, 2, v5")
    A("v_sub_u32 v4, v4, v5")
    A("s_mov_b32 s60, 0")
    A.label("L_attn_qb")
    A("s_add_u32 s61, s47, s60")
    A("s_lshl_b32 s48, s46, 6")
    A("s_add_u32 s48, s48, s61")
    A("s_lshl_b32 s48, s48, 11")
    A(f"buffer_load_dwordx4 v[16:19], v3, s[32:35], s48 offen")
    A(f"buffer_load_dwordx4 v[20:23], v3, s[32:35], s48 offen offset:1024")
    attn_slow(A, 16, "s61", "s49", 24)
    A("s_lshl_b32 s48, s61, 5")
    A("s_add_u32 s48, s48, s46")
    A("s_lshl_b32 s48, s48, 11")
    A(f"s_add_u32 s48, s48, {O_BASE}")
    A(f"buffer_store_dwordx4 v[24:27], v3, s[32:35], s48 offen")
    A(f"buffer_store_dwordx4 v[28:31], v3, s[32:35], s48 offen offset:1024")
    A("s_add_u32 s60, s60, 1")
    A("s_cmp_lt_u32 s60, 2")
    A("s_cbranch_scc1 L_attn_qb")
    A.label("L_end_attn")
    A("s_endpgm")
    return name

WO_LDS = 32768
def kernel_out(A):
    name = "outp_kernel"
    kernel_begin(A, name)
    A.endl = "L_end_out"
    prologue(A)
    A("v_lshrrev_b32 v3, 3, v2")
    A("v_and_b32 v4, 7, v2")
    A("v_lshrrev_b32 v5, 1, v3")
    A("v_and_b32 v5, 1, v5")
    A("v_lshlrev_b32 v5, 2, v5")
    A("v_xor_b32 v4, v4, v5")
    A("v_lshlrev_b32 v3, 11, v3")
    A("v_lshl_add_u32 v3, v4, 4, v3")
    A("s_lshl_b32 s44, s41, 7")
    A("v_add_u32 v3, s44, v3")
    A("s_lshl_b32 s44, s42, 18")
    A("s_lshl_b32 s45, s42, 14")
    A(f"s_add_u32 s45, s45, {WO_LDS}")
    for i in range(16):
        A(f"s_add_u32 m0, s45, {i*1024}")
        A("s_nop 0")
        A(f"buffer_load_dwordx4 v3, s[24:27], s44 offen lds")
        A("s_add_u32 s44, s44, 0x4000")
    A("s_and_b32 s46, s42, 3")
    A("s_lshr_b32 s47, s42, 2")
    A("s_lshl_b32 s48, s40, 2")
    A("s_add_u32 s48, s48, s46")
    A("s_lshl_b32 s49, s48, 16")
    A("s_lshl_b32 s50, s47, 15")
    A("s_add_u32 s49, s49, s50")
    A(f"s_add_u32 s49, s49, {O_BASE}")
    A("v_lshlrev_b32 v3, 4, v2")
    OF = 64
    for s in range(32):
        A(f"buffer_load_dwordx4 {vr(OF+4*s,4)}, v3, s[32:35], s49 offen offset:{(s%4)*1024} sc1")
        if s % 4 == 3:
            A("s_add_u32 s49, s49, 4096")
    A("v_lshrrev_b32 v4, 4, v2")
    A("v_bfe_u32 v5, v2, 2, 2")
    A("v_and_b32 v6, 3, v2")
    A("v_lshrrev_b32 v7, 1, v4")
    A("v_lshl_add_u32 v7, v7, 2, v5")
    A("v_and_b32 v8, 1, v4")
    A("v_lshlrev_b32 v8, 1, v8")
    A("v_lshrrev_b32 v9, 1, v6")
    A("v_add_u32 v8, v8, v9")
    A("v_lshrrev_b32 v9, 1, v5")
    A("v_lshlrev_b32 v9, 2, v9")
    A("v_xor_b32 v8, v8, v9")
    A("v_lshlrev_b32 v7, 7, v7")
    A("v_lshl_add_u32 v7, v8, 4, v7")
    A("v_and_b32 v6, 1, v6")
    A("v_lshl_add_u32 v7, v6, 3, v7")
    A("s_lshl_b32 s50, s47, 16")
    A(f"s_add_u32 s50, s50, {WO_LDS}")
    A("v_add_u32 v10, s50, v7")
    A("v_xor_b32 v11, 64, v10")
    D = 16
    for i in range(32):
        A(f"v_mov_b32 v{D+i}, 0")
    A("s_waitcnt vmcnt(32)")
    A("s_barrier")
    WF = [48, 56]
    def wreads(s, st):
        f = WF[st]
        return [f"ds_read_b64_tr_b16 {vr(f,2)}, v10 offset:{s*2048}",
                f"ds_read_b64_tr_b16 {vr(f+2,2)}, v10 offset:{s*2048+1024}",
                f"ds_read_b64_tr_b16 {vr(f+4,2)}, v11 offset:{s*2048}",
                f"ds_read_b64_tr_b16 {vr(f+6,2)}, v11 offset:{s*2048+1024}"]
    for r in wreads(0, 0): A(r)
    for s in range(32):
        st = s % 2
        R = wreads(s + 1, 1 - st) if s < 31 else []
        A(f"s_waitcnt vmcnt({31-s}) lgkmcnt(2)")
        mfma(A, D, WF[st], OF + 4 * s)
        if R:
            A(R[0]); A(R[1])
            A("s_waitcnt lgkmcnt(2)")
        else:
            A("s_waitcnt lgkmcnt(0)")
        mfma(A, D + 16, WF[st] + 4, OF + 4 * s)
        if R:
            A(R[2]); A(R[3])
    A("s_nop 15")
    A("s_lshl_b32 s50, s46, 13")
    A("v_add_u32 v4, s50, v3")
    A("s_cmp_eq_u32 s47, 0")
    A("s_cbranch_scc1 L_out_lo")
    for i in range(8):
        A(f"ds_write_b128 v4, {vr(D+4*i,4)} offset:{1024*i}")
    A("s_waitcnt lgkmcnt(0)")
    A("s_barrier")
    A("s_branch L_end_out")
    A.label("L_out_lo")
    A("s_barrier")
    for i in range(8):
        A(f"ds_read_b128 {vr(OF+4*i,4)}, v4 offset:{1024*i}")
    A("v_and_b32 v5, 31, v2")
    A("s_lshl_b32 s50, s48, 5")
    A("v_add_u32 v5, s50, v5")
    A("v_lshlrev_b32 v5, 11, v5")
    A("v_lshrrev_b32 v6, 5, v2")
    A("v_lshl_add_u32 v5, v6, 4, v5")
    A("s_lshl_b32 s50, s41, 7")
    A("v_add_u32 v5, s50, v5")
    A("s_waitcnt lgkmcnt(0)")
    for i in range(32):
        A(f"v_add_f32 v{D+i}, v{D+i}, v{OF+i}")
    P = 128
    pack_tile(A, P, D); pack_tile(A, P + 8, D + 16)
    A("s_nop 1")
    for q in range(4):
        A(f"v_permlane32_swap_b32 v{P+4*q}, v{P+4*q+2}")
        A(f"v_permlane32_swap_b32 v{P+4*q+1}, v{P+4*q+3}")
    A("s_nop 1")
    for q in range(4):
        A(f"buffer_store_dwordx4 {vr(P+4*q,4)}, v5, s[28:31], 0 offen offset:{32*q}")
    A.label("L_end_out")
    A("s_endpgm")
    return name

def main(out):
    A = Asm()
    A.raw(HEADER_COMMENT.rstrip())
    A.raw(f"; @launch kernel=qkv_kernel grid=(256,1,1) block=(512,1,1) lds={3*SLOT}")
    A.raw(f"; @launch kernel=attn_kernel grid=(256,1,1) block=(256,1,1) lds=0")
    A.raw(f"; @launch kernel=outp_kernel grid=(256,1,1) block=(512,1,1) lds=163840")
    A.raw('.amdgcn_target "amdgcn-amd-amdhsa--gfx950"')
    A.raw(".text")
    kernel_qkv(A)
    kernel_attn(A)
    kernel_out(A)
    A.raw('.section .rodata,"a"')
    kernel_desc(A, "qkv_kernel", 168, 80, 168)
    kernel_desc(A, "attn_kernel", 128, 80, 128)
    kernel_desc(A, "outp_kernel", 192, 80, 192)
    open(out, "w").write(A.text())

if __name__ == "__main__":
    main(sys.argv[1])
```

```python
from asmlib import *
SLOT = 40960
NS = 3
ACC = 16
FR = [112, 152]
XA0 = 192
WA0 = 194
XA = 196
WA = 198

def mfma16(A, d, a, b, c=None):
    cs = vr(d, 4) if c is None else (c if isinstance(c, str) else vr(c, 4))
    A(f"v_mfma_f32_16x16x32_bf16 {vr(d,4)}, {vr(a,4)}, {vr(b,4)}, {cs}")

def loader_setup(A):
    A("s_sub_u32 s43, s42, 4")
    A("v_lshrrev_b32 v3, 3, v2")
    A("v_and_b32 v4, 7, v2")
    for i in range(10):
        vo = 10 + i
        if i < 4:
            A(f"s_add_u32 s44, s43, {4*i}")
            A("s_lshl_b32 s44, s44, 3")
            A("v_add_u32 v5, s44, v3")
            A("v_bfe_u32 v6, v5, 1, 3")
            A("v_xor_b32 v6, v6, v4")
            A("s_lshl_b32 s44, s40, 7")
            A("v_add_u32 v5, s44, v5")
            A("v_lshlrev_b32 v5, 11, v5")
            A(f"v_lshl_add_u32 v{vo}, v6, 4, v5")
        else:
            q = 4 * (i - 4)
            part = q // 8
            A(f"s_add_u32 s44, s43, {q%8}")
            A("s_lshl_b32 s44, s44, 3")
            A("v_add_u32 v5, s44, v3")
            A("v_and_b32 v6, 2, v5")
            A("v_bfe_u32 v7, v5, 3, 1")
            A("v_lshl_or_b32 v6, v7, 2, v6")
            A("v_xor_b32 v6, v6, v4")
            A("v_mul_u32_u24 v5, 0x1800, v5")
            A("s_lshl_b32 s44, s41, 7")
            A(f"s_add_u32 s44, s44, {part*2048}")
            A("v_add_u32 v5, s44, v5")
            A(f"v_lshl_add_u32 v{vo}, v6, 4, v5")
    A("s_lshl_b32 s46, s43, 10")
    A("s_mov_b32 s47, 0")
    A("s_mov_b32 s48, 0")

def loader_issue(A, slot):
    for i in range(10):
        if isinstance(slot, int):
            A(f"s_add_u32 m0, s46, {slot + i*4096}")
        else:
            A(f"s_add_u32 m0, {slot}, {i*4096}")
        A("s_nop 0")
        if i < 4:
            A(f"buffer_load_dwordx4 v{10+i}, s[16:19], s47 offen lds")
        else:
            A(f"buffer_load_dwordx4 v{10+i}, s[20:23], s48 offen lds")
    A("s_add_u32 s47, s47, 128")
    A("s_add_u32 s48, s48, 0x60000")

def loader(A):
    loader_setup(A)
    loader_issue(A, 0); loader_issue(A, SLOT); loader_issue(A, 2 * SLOT)
    A("s_waitcnt vmcnt(20)")
    A("s_barrier")
    A("s_mov_b32 s49, s46")
    A("s_mov_b32 s50, 13")
    lp = A.newlabel("Lld")
    A.label(lp)
    A("s_waitcnt vmcnt(10)")
    A("s_barrier")
    loader_issue(A, "s49")
    A(f"s_add_u32 s49, s49, {SLOT}")
    A(f"s_cmp_ge_u32 s49, {3*SLOT}")
    A(f"s_cselect_b32 s49, s46, s49")
    A("s_sub_u32 s50, s50, 1")
    A("s_cmp_lg_u32 s50, 0")
    A(f"s_cbranch_scc1 {lp}")
    A("s_waitcnt vmcnt(10)")
    A("s_barrier")
    A("s_waitcnt vmcnt(0)")
    A("s_barrier")
    A("s_barrier")

def compute_setup(A):
    A("s_and_b32 s44, s42, 1")
    A("s_lshr_b32 s45, s42, 1")
    A("v_and_b32 v3, 15, v2")
    A("v_lshrrev_b32 v4, 4, v2")
    A("v_lshrrev_b32 v5, 1, v3")
    A("s_lshl_b32 s46, s45, 6")
    A("v_add_u32 v6, s46, v3")
    A("v_lshlrev_b32 v6, 7, v6")
    for ks in range(2):
        A(f"v_add_u32 v7, {4*ks}, v4")
        A("v_xor_b32 v7, v7, v5")
        A(f"v_lshl_add_u32 v{XA0+ks}, v7, 4, v6")
    A("v_bfe_u32 v5, v2, 2, 2")
    A("v_and_b32 v6, 3, v2")
    A("v_lshl_add_u32 v7, v4, 3, v5")
    A("v_lshrrev_b32 v8, 1, v5")
    A("v_and_b32 v9, 1, v4")
    A("v_lshl_or_b32 v8, v9, 1, v8")
    A("s_lshl_b32 s46, s44, 1")
    A("v_xor_b32 v8, s46, v8")
    A("v_lshlrev_b32 v7, 7, v7")
    A("v_lshl_add_u32 v7, v8, 5, v7")
    A("v_lshl_add_u32 v7, v6, 3, v7")
    A(f"v_add_u32 v{WA0}, 0x4000, v7")
    A(f"v_xor_b32 v{WA0+1}, 32, v{WA0}")
    for i in range(96):
        A(f"v_mov_b32 v{ACC+i}, 0")
    for i in range(40):
        A(f"v_mov_b32 v{FR[1]+i}, 0")
    for i in range(4):
        A(f"v_mov_b32 v{XA+i}, v{XA0+i}")

def reads(ks, st):
    f = FR[st]
    X = [f"ds_read_b128 {vr(f+4*tt,4)}, v{XA+ks} offset:{tt*2048}" for tt in range(4)]
    W = []
    for w in range(6):
        part, ft = w // 2, w % 2
        for sec in range(2):
            W.append(f"ds_read_b64_tr_b16 {vr(f+16+4*w+2*sec,2)}, v{WA+ft} offset:{part*8192+ks*4096+sec*512}")
    return [X[0], W[0], W[1], X[1], X[2], X[3]] + W[2:]

def mf(A, i, st):
    f = FR[st]
    w, tt = i // 4, i % 4
    d = ACC + 4 * i
    X = f + 4 * tt; W = f + 16 + 4 * w
    if w < 4: mfma16(A, d, W, X)
    else: mfma16(A, d, X, W)

def need(i):
    w, tt = i // 4, i % 4
    nx = [1, 4, 5, 6][tt]
    nw = 3 if w == 0 else 6 + 2 * w
    return max(nx, nw)

def step(A, st, R, first, extra=None, pre_done=16):
    issued = 0
    done = pre_done
    for i in range(24):
        n = need(i)
        if n > done:
            cnt = (16 - n) + issued
            A(f"s_waitcnt lgkmcnt({min(cnt,15)})")
            done = n if cnt <= 15 else max(done, 16 - (15 - issued))
            assert done >= n
        mf(A, i, st)
        if extra and i in extra:
            for e in extra[i]: A(e)
        if i >= first and issued < len(R):
            A(R[issued]); issued += 1
    assert issued == len(R), (issued, len(R))

def compute(A):
    A("s_mov_b32 s47, 0")
    A("s_mov_b32 s50, 16")
    lp = A.newlabel("Lmm")
    A.label(lp)
    A("s_waitcnt lgkmcnt(0)")
    step(A, 1, reads(0, 0), 4, extra={3: ["s_barrier"]})
    upd = [f"s_add_u32 s47, s47, {SLOT}", f"s_cmp_ge_u32 s47, {NS*SLOT}", "s_cselect_b32 s47, 0, s47"]
    ex = {18: upd}
    for i in range(4):
        ex[19 + i] = [f"v_add_u32 v{XA+i}, s47, v{XA0+i}"]
    ex[23] = ["s_sub_u32 s50, s50, 1", "s_cmp_lg_u32 s50, 0"]
    step(A, 0, reads(1, 1), 0, extra=ex, pre_done=0)
    A(f"s_cbranch_scc1 {lp}")
    A("s_waitcnt lgkmcnt(0)")
    A("s_barrier")
    step(A, 1, [], 0)
```

```python
import sys, struct
from asmlib import *
import p1
from p1 import SLOT, ACC, mfma16

def f32(x): return struct.unpack("<I", struct.pack("<f", x))[0]

KV_BASE = 0
O_BASE = 8 << 20
FKV_BASE = 12 << 20
FO_BASE = 13 << 20
XT_BASE = 14 << 20
ST_BASE = 16 << 20
WS_BYTES = 268435456
QSCALE = 0x3e8293ee
NEGBIG = 0xf149f2ca
BIGB = 1e30
WO_LDS = 32768
CTL1 = 162816
M_O = 0
M_L = 16384
CTL2 = 17408
POLL_MAX = 400000

class Opt:
    stamps = False
    touch = {-1: 1, 1: 1, 5: 1, 9: 1}
    force_slow = False
    force_global = False
O = Opt()

def mfma32(A, d, a, b, c=None):
    cs = vr(d, 16) if c is None else (c if isinstance(c, str) else vr(c, 16))
    A(f"v_mfma_f32_32x32x16_bf16 {vr(d,16)}, {vr(a,4)}, {vr(b,4)}, {cs}")

nstamp = [0]
def stamp(A, idx):
    if O.stamps:
        A(f"s_memrealtime s[{80+2*idx}:{81+2*idx}]")

def prologue(A):
    A("s_cmp_ge_u32 s2, 256")
    A("s_cbranch_scc1 L_end")
    A("s_load_dwordx8 s[4:11], s[0:1], 0")
    A("s_load_dwordx4 s[12:15], s[0:1], 32")
    stamp(A, 0)
    A("s_and_b32 s43, s2, 7")
    A("s_lshr_b32 s44, s2, 3")
    A("s_and_b32 s40, s44, 15")
    A("s_lshr_b32 s44, s44, 4")
    A("s_lshl_b32 s41, s43, 1")
    A("s_add_u32 s41, s41, s44")
    A("v_lshrrev_b32 v1, 6, v0")
    A("v_and_b32 v2, 63, v0")
    A("v_readfirstlane_b32 s42, v1")

def srds(A):
    A("s_waitcnt lgkmcnt(0)")
    for base, ptr, n in ((16, 4, 0x400000), (20, 6, 0x600000), (24, 8, 0x200000), (28, 10, 0x400000), (32, 14, WS_BYTES), (36, 12, 256)):
        A(f"s_mov_b32 s{base}, s{ptr}")
        A(f"s_mov_b32 s{base+1}, s{ptr+1}")
        A(f"s_mov_b32 s{base+2}, {n:#x}")
        A(f"s_mov_b32 s{base+3}, 0x20000")

def wo_voff(A, dst):
    A("v_lshrrev_b32 v3, 3, v2")
    A("v_and_b32 v4, 7, v2")
    A("v_and_b32 v5, 6, v3")
    A("v_xor_b32 v4, v4, v5")
    A("v_lshlrev_b32 v3, 11, v3")
    A("v_lshl_add_u32 v3, v4, 4, v3")
    A("s_lshl_b32 s44, s40, 7")
    A(f"v_add_u32 v{dst}, s44, v3")

def wo_issue(A, pieces, add_sgpr=None):
    for pc in pieces:
        if add_sgpr:
            A(f"s_add_u32 m0, s51, {WO_LDS + pc*1024}")
            A(f"s_add_u32 s48, s52, {pc*16384}")
        else:
            A(f"s_mov_b32 m0, {WO_LDS + pc*1024}")
            A(f"s_mov_b32 s48, {pc*16384}")
        A(f"buffer_load_dwordx4 v12, s[24:27], s48 offen lds")

WO_PART = {"A": list(range(88, 127)), "B": list(range(8, 48)), "C": list(range(48, 88)), "D": list(range(0, 8)), "E": [127]}

def touch_setup(A):
    A("s_lshl_b32 s55, s2, 3")
    A("v_and_b32 v5, 7, v2")
    A("v_add_u32 v5, s55, v5")
    A("v_lshlrev_b32 v5, 11, v5")
    A("v_lshrrev_b32 v6, 3, v2")
    A("v_lshl_add_u32 v20, v6, 7, v5")
    A("s_lshr_b32 s52, s2, 3")
    A("s_and_b32 s53, s2, 7")
    A("v_lshrrev_b32 v5, 4, v2")
    A("v_lshlrev_b32 v5, 6, v5")
    A("v_bfe_u32 v6, v2, 3, 1")
    A("v_add_u32 v5, v5, v6")
    A("s_lshl_b32 s55, s52, 1")
    A("v_add_u32 v5, s55, v5")
    A("v_mul_u32_u24 v5, 0x1800, v5")
    A("v_bfe_u32 v6, v2, 1, 2")
    A("v_lshl_add_u32 v5, v6, 11, v5")
    A("v_and_b32 v7, 1, v2")
    A("v_lshl_add_u32 v5, v7, 7, v5")
    A("s_lshl_b32 s55, s53, 8")
    A("v_add_u32 v21, s55, v5")
    A("v_mov_b32 v7, 0x7fffffff")
    A("v_cmp_eq_u32 vcc, 3, v6")
    A("s_nop 1")
    A("v_cndmask_b32 v21, v21, v7, vcc")
    A("v_cmp_le_u32 vcc, 32, v2")
    A("s_nop 1")
    A("v_cndmask_b32 v20, v20, v7, vcc")
    A("v_lshlrev_b32 v22, 7, v2")

def xloader(A):
    A("v_lshrrev_b32 v3, 3, v2")
    A("v_and_b32 v4, 7, v2")
    A("v_lshrrev_b32 v5, 1, v3")
    A("v_xor_b32 v6, v5, v4")
    A("v_xor_b32 v7, 4, v6")
    A("s_lshl_b32 s44, s40, 7")
    A("v_add_u32 v5, s44, v3")
    A("v_lshlrev_b32 v5, 11, v5")
    A("v_lshl_add_u32 v10, v6, 4, v5")
    A("v_lshl_add_u32 v11, v7, 4, v5")
    srds(A)
    def issue(c, slot):
        for p in range(16):
            if isinstance(slot, int):
                A(f"s_mov_b32 m0, {slot + p*1024}")
                A(f"s_mov_b32 s48, {c*128 + p*16384}")
            else:
                A(f"s_add_u32 m0, {slot}, {p*1024}")
                A(f"s_add_u32 s48, s47, {p*16384}")
            A(f"buffer_load_dwordx4 v{10+p%2}, s[16:19], s48 offen lds")
    issue(0, 0); issue(1, SLOT)
    wo_voff(A, 12)
    A("s_waitcnt vmcnt(16)")
    A("s_barrier")
    issue(2, 2 * SLOT)
    A("s_mov_b32 s49, 0")
    A("s_mov_b32 s47, 384")
    A("s_mov_b32 s50, 13")
    A.label("L_xl_loop")
    A("s_waitcnt vmcnt(16)")
    A("s_barrier")
    issue(None, "s49")
    A("s_add_u32 s47, s47, 128")
    A(f"s_add_u32 s49, s49, {SLOT}")
    A(f"s_cmp_ge_u32 s49, {3*SLOT}")
    A("s_cselect_b32 s49, 0, s49")
    A("s_sub_u32 s50, s50, 1")
    A("s_cmp_lg_u32 s50, 0")
    A("s_cbranch_scc1 L_xl_loop")
    wo_issue(A, WO_PART["A"][:15])
    A("s_waitcnt vmcnt(31)")
    A("s_barrier")
    wo_issue(A, WO_PART["B"][:16])
    A("s_waitcnt vmcnt(31)")
    A("s_barrier")
    wo_issue(A, WO_PART["C"][:16])
    A("s_barrier")
    wo_issue(A, WO_PART["D"])

def wloader(A):
    A("v_lshrrev_b32 v3, 3, v2")
    A("v_and_b32 v4, 7, v2")
    A("v_and_b32 v5, 2, v3")
    A("v_xor_b32 v6, v5, v4")
    A("v_xor_b32 v7, 4, v6")
    A("s_sub_u32 s43, s42, 5")
    A("s_lshl_b32 s44, s43, 5")
    A("v_add_u32 v5, s44, v3")
    A("v_mul_u32_u24 v5, 0x1800, v5")
    A("s_lshl_b32 s44, s41, 7")
    A("v_add_u32 v5, s44, v5")
    A("v_lshl_add_u32 v10, v6, 4, v5")
    A("v_lshl_add_u32 v11, v7, 4, v5")
    A("s_lshl_b32 s46, s43, 12")
    A("s_add_u32 s46, s46, 0x4000")
    srds(A)
    def issue(c, slot):
        for part in range(3):
            for kg in range(4):
                if isinstance(slot, int):
                    A(f"s_add_u32 m0, s46, {slot + part*8192 + kg*1024}")
                    A(f"s_mov_b32 s48, {c*0x60000 + kg*8*6144 + part*2048}")
                else:
                    A(f"s_add_u32 m0, {slot}, {part*8192 + kg*1024}")
                    A(f"s_add_u32 s48, s47, {kg*8*6144 + part*2048}")
                A(f"buffer_load_dwordx4 v{10+kg%2}, s[20:23], s48 offen lds")
    issue(0, 0); issue(1, SLOT)
    wo_voff(A, 12)
    A("s_mul_i32 s51, s43, 12288")
    A("s_mul_i32 s52, s43, 196608")
    A("s_waitcnt vmcnt(12)")
    A("s_barrier")
    issue(2, 2 * SLOT)
    A("s_mov_b32 s49, s46")
    A(f"s_mov_b32 s47, {3*0x60000}")
    A("s_mov_b32 s50, 13")
    A.label("L_wl_loop")
    A("s_waitcnt vmcnt(12)")
    A("s_barrier")
    issue(None, "s49")
    A("s_add_u32 s47, s47, 0x60000")
    A(f"s_add_u32 s49, s49, {SLOT}")
    A(f"s_cmp_ge_u32 s49, {3*SLOT}")
    A("s_cselect_b32 s49, s46, s49")
    A("s_sub_u32 s50, s50, 1")
    A("s_cmp_lg_u32 s50, 0")
    A("s_cbranch_scc1 L_wl_loop")
    wo_issue(A, WO_PART["A"][15:27], True)
    A("s_waitcnt vmcnt(24)")
    A("s_barrier")
    wo_issue(A, WO_PART["B"][16:28], True)
    A("s_waitcnt vmcnt(24)")
    A("s_barrier")
    wo_issue(A, WO_PART["C"][16:28], True)
    A("s_barrier")

def aux(A):
    touch_setup(A)
    A("s_memrealtime s[60:61]")
    A("s_getreg_b32 s63, hwreg(HW_REG_XCC_ID)")
    srds(A)
    A("s_and_b32 s63, s63, 7")
    A("s_andn2_b32 s60, s60, 15")
    A("s_or_b32 s60, s60, 8")
    A("v_mov_b32 v24, s60"); A("v_mov_b32 v25, s61"); A("v_mov_b32 v26, 0"); A("v_mov_b32 v27, 0")
    A("v_mov_b32 v8, 0")
    st = {"c": 2}
    def touch():
        c = st["c"]; st["c"] += 4
        if c > 15: return
        c = min(c, 12)
        A(f"s_mov_b32 s57, {c*128}")
        A(f"s_mov_b32 s58, {c*0x60000}")
        A("buffer_load_dword v30, v21, s[20:23], s58 offen")
        A("buffer_load_dword v31, v20, s[16:19], s57 offen")
    A("s_sleep 4")
    for i in range(O.touch.get(-1, 0)): touch()
    A("s_mov_b64 exec, 1")
    A("buffer_atomic_cmpswap_x2 v[24:27], v8, s[36:39], 0 offen sc0 sc1")
    A("s_mov_b64 exec, -1")
    for c in range(17):
        if c == 16:
            A("s_waitcnt lgkmcnt(0)")
        A("s_barrier")
        if O.touch.get(c, 0):
            A("s_sleep 6")
            for i in range(O.touch[c]): touch()
        if c == 4:
            A("s_waitcnt vmcnt(0)")
            A("v_readfirstlane_b32 s56, v24")
            A("v_readfirstlane_b32 s57, v25")
            A("s_cmp_eq_u32 s56, 0")
            A("s_cselect_b32 s60, s60, s56")
            A("s_cselect_b32 s61, s61, s57")
            A("s_or_b32 s56, s60, s63")
            A("v_mov_b32 v24, s56"); A("v_mov_b32 v25, s61")
            A("s_lshl_b32 s57, s41, 4")
            A("s_add_u32 s57, s57, s40")
            A("s_lshl_b32 s57, s57, 7")
            A(f"s_add_u32 s59, s57, {XT_BASE}")
            A("s_mov_b64 exec, 1")
            A("buffer_store_dwordx2 v[24:25], v8, s[32:35], s59 offen sc1")
            A("s_mov_b64 exec, -1")
        if c == 9:
            A("s_lshl_b32 s57, s2, 13")
            A("buffer_load_dword v30, v22, s[24:27], s57 offen")
            A("s_lshl_b32 s57, s41, 6")
            A("s_lshl_b32 s58, s40, 1")
            A("s_add_u32 s57, s57, s58")
            A("s_lshl_b32 s58, s57, 13")
            for k in range(4):
                off = (k // 2) * 32 * 8192 + (k % 2) * 8192
                A(f"s_add_u32 s54, s58, {KV_BASE + off}")
                A("buffer_load_dword v30, v22, s[32:35], s54 offen")
            A("v_and_b32 v5, 1, v2")
            A("v_bfe_u32 v6, v2, 1, 1")
            A("v_lshl_add_u32 v5, v6, 5, v5")
            A("v_lshlrev_b32 v5, 7, v5")
            A("s_lshl_b32 s58, s57, 7")
            A(f"s_add_u32 s58, s58, {FKV_BASE}")
            A("buffer_load_dword v30, v5, s[32:35], s58 offen")
            A("buffer_load_dwordx2 v[26:27], v8, s[32:35], s59 offen offset:128 sc1")
            A("buffer_load_dwordx2 v[28:29], v8, s[32:35], s59 offen offset:256 sc1")
        if c == 13:
            A("s_waitcnt vmcnt(0)")
            A("v_cmp_eq_u64 vcc, v[24:25], v[26:27]")
            A("v_cmp_eq_u64 s[54:55], v[24:25], v[28:29]")
            A("s_cmp_ge_u32 s40, 15")
            A("s_cselect_b32 s56, 1, vcc_lo")
            A("s_cmp_ge_u32 s40, 14")
            A("s_cselect_b32 s57, 1, s54")
            A("s_and_b32 s56, s56, s57")
            A("s_and_b32 s56, s56, 1")
            if O.force_global:
                A("s_mov_b32 s56, 0")
            A("v_mov_b32 v24, s60"); A("v_mov_b32 v25, s61"); A("v_mov_b32 v26, s56"); A("v_mov_b32 v27, 0")
            A(f"v_mov_b32 v5, {CTL1}")
            A("ds_write_b128 v5, v[24:27]")
    A("v_mov_b32 v24, 0")
    A("v_lshlrev_b32 v5, 2, v2")
    A(f"ds_write_b32 v5, v24 offset:{CTL2}")

def read_ctl1(A, t):
    A(f"v_mov_b32 v1, {CTL1}")
    A(f"ds_read_b128 {vr(t,4)}, v1")

def take_ctl1(A, t):
    A(f"v_readfirstlane_b32 s60, v{t}")
    A(f"v_readfirstlane_b32 s61, v{t+1}")
    A(f"v_readfirstlane_b32 s62, v{t+2}")

ONES = [4, 8, 12]
OA = 16; LA = 80; PB = [96, 104]; KL = 112; QF = 144; SB = [176, 192]; R1 = 208; R2 = 112; BIAS = 240

def bias_make(A, upper):
    for r in range(16):
        ko = 8 * (r // 4) + r % 4
        c = (0.5 - ko) * BIGB
        if not upper:
            A(f"v_add_f32 v{BIAS+r}, {f32(c):#x}, v1")
        else:
            A(f"v_sub_f32 v{BIAS+r}, {f32(-c):#x}, v1")
    for r in range(16):
        A(f"v_min_f32 v{BIAS+r}, 0, v{BIAS+r}")

def tb_make(A):
    A("v_and_b32 v1, 31, v2")
    A("v_lshrrev_b32 v0, 5, v2")
    A("v_lshlrev_b32 v0, 2, v0")
    A("v_sub_u32 v1, v1, v0")
    A("v_cvt_f32_i32 v1, v1")
    A(f"v_mul_f32 v1, {f32(BIGB):#x}, v1")

class Tiles:
    def __init__(self, A, inited):
        self.A = A
        self.inited = inited
        self.n = 0
    def qk(self, t, tile, m):
        kv, qb, bias, ones = tile
        S = SB[t % 2]
        if m == 0:
            mfma32(self.A, S, kv, QF + 8 * qb, BIAS if bias else "0")
        else:
            mfma32(self.A, S, kv + 4, QF + 8 * qb + 4)
    def pv(self, t, tile, f):
        kv, qb, bias, ones = tile
        first = (f == 0 and qb not in self.inited)
        mfma32(self.A, OA + 16 * qb, kv + 8 + 4 * f, PB[t % 2] + 4 * f, "0" if first else None)
    def ls(self, t, tile, f):
        kv, qb, bias, ones = tile
        first = (f == 0 and qb not in self.inited)
        mfma16(self.A, LA + 4 * qb, ones, PB[t % 2] + 4 * f, "0" if first else None)
        if first: self.inited.add(qb)
    def run(self, tiles, hooks=None, waits=None):
        A = self.A
        hooks = hooks or {}; waits = waits or {}
        base = self.n
        if 0 in waits: A(waits[0])
        self.qk(base, tiles[0], 0); self.qk(base, tiles[0], 1)
        A("s_nop 11")
        for i, tile in enumerate(tiles):
            t = base + i
            S = SB[t % 2]; P = PB[t % 2]
            prev = tiles[i - 1] if i > 0 else None
            nxt = tiles[i + 1] if i + 1 < len(tiles) else None
            if i in hooks: hooks[i]()
            e = lambda r: A(f"v_exp_f32 v{S+r}, v{S+r}")
            c = lambda k: A(f"v_cvt_pk_bf16_f32 v{P+k}, v{S+2*k}, v{S+2*k+1}")
            e(0); e(1)
            if prev: self.pv(t - 1, prev, 1)
            for r in range(2, 6): e(r)
            if prev: self.ls(t - 1, prev, 1)
            e(6); e(7)
            if nxt:
                if (i + 1) in waits: A(waits[i + 1])
                self.qk(t + 1, nxt, 0)
            for k in range(4): c(k)
            e(8)
            if nxt: self.qk(t + 1, nxt, 1)
            for r in range(9, 13): e(r)
            self.pv(t, tile, 0)
            for r in range(13, 16): e(r)
            c(4)
            self.ls(t, tile, 0)
            for k in range(5, 8): c(k)
        A("s_nop 1")
        t = base + len(tiles) - 1
        self.pv(t, tiles[-1], 1)
        self.ls(t, tiles[-1], 1)
        self.n = base + len(tiles)

def lds_wait(A, off, val, tmp):
    lp = A.newlabel("Lw")
    A.label(lp)
    A(f"ds_read_b32 v{tmp}, v0 offset:{off}")
    A("s_waitcnt lgkmcnt(0)")
    A(f"v_readfirstlane_b32 s58, v{tmp}")
    A(f"s_cmp_lt_u32 s58, {val}")
    A(f"s_cbranch_scc1 {lp}")

def merge(A, p, rnd):
    qf = 2 * (rnd - 1) + p; qs = 2 * (rnd - 1) + 1 - p
    T = SB[0]
    A("s_lshl_b32 s58, s44, 2")
    A("v_mov_b32 v0, s58")
    if rnd == 2:
        lds_wait(A, CTL2 + 16 + (1 - p) * 8, 1, PB[0])
    A("s_lshl_b32 s58, s44, 12")
    A(f"v_add_u32 v{PB[0]}, s58, v3")
    A("s_lshl_b32 s58, s44, 8")
    A(f"v_lshlrev_b32 v{PB[0]+1}, 2, v2")
    A(f"v_add_u32 v{PB[0]+1}, s58, v{PB[0]+1}")
    A(f"v_and_b32 v{PB[0]+2}, 16, v2")
    A(f"v_cmp_ne_u32 vcc, 0, v{PB[0]+2}")
    A("s_nop 7")
    A(f"v_cndmask_b32 v{PB[0]+3}, v{LA+4*qs}, v{LA+4*qs+1}, vcc")
    A(f"v_cndmask_b32 v{PB[0]+4}, v{LA+4*qf}, v{LA+4*qf+1}, vcc")
    for i in range(4):
        A(f"ds_write_b128 v{PB[0]}, {vr(OA+16*qs+4*i,4)} offset:{M_O + p*8192 + i*1024}")
    A(f"ds_write_b32 v{PB[0]+1}, v{PB[0]+3} offset:{M_L + p*512}")
    A(f"v_mov_b32 v{PB[0]+5}, {rnd}")
    A(f"ds_write_b32 v0, v{PB[0]+5} offset:{CTL2 + p*8}")
    lds_wait(A, CTL2 + (1 - p) * 8, rnd, PB[0] + 6)
    for i in range(4):
        A(f"ds_read_b128 {vr(T+4*i,4)}, v{PB[0]} offset:{M_O + (1-p)*8192 + i*1024}")
    A(f"ds_read_b32 v{PB[0]+3}, v{PB[0]+1} offset:{M_L + (1-p)*512}")
    A("s_waitcnt lgkmcnt(0)")
    A(f"ds_write_b32 v0, v{PB[0]+5} offset:{CTL2 + 16 + p*8}")
    Lr = PB[0] + 4
    A(f"v_add_f32 v{Lr}, v{Lr}, v{PB[0]+3}")
    Ob = OA + 16 * qf
    for i in range(16):
        A(f"v_add_f32 v{Ob+i}, v{Ob+i}, v{T+i}")
    A(f"v_rcp_f32 v{PB[0]+3}, v{Lr}")
    A(f"v_add_f32 v{T}, |v{Ob}|, |v{Ob+1}|")
    A(f"v_add_f32 v{T+1}, |v{Ob+2}|, |v{Ob+3}|")
    for i in range(4, 16, 2):
        A(f"v_add_f32 v{T}, v{T}, |v{Ob+i}|")
        A(f"v_add_f32 v{T+1}, v{T+1}, |v{Ob+i+1}|")
    A(f"v_add_f32 v{T}, v{T}, v{T+1}")
    A(f"v_cmp_le_f32 vcc, {f32(2.0**-30):#x}, v{Lr}")
    A(f"s_mov_b64 s[56:57], vcc")
    A(f"v_cmp_ge_f32 vcc, {f32(2.0**30):#x}, v{Lr}")
    A("s_and_b64 s[56:57], s[56:57], vcc")
    A(f"v_cmp_gt_f32 vcc, {f32(2.0**100):#x}, v{T}")
    A("s_and_b64 s[56:57], s[56:57], vcc")
    for i in range(16):
        A(f"v_mul_f32 v{Ob+i}, v{Ob+i}, v{PB[0]+3}")
    for i in range(8):
        A(f"v_cvt_pk_bf16_f32 v{T+16+i}, v{Ob+2*i}, v{Ob+2*i+1}")
    skip = A.newlabel("Lskip")
    A("s_cmp_eq_u64 s[56:57], -1")
    if O.force_slow:
        A("s_cmp_eq_u32 s40, 99")
    A(f"s_cselect_b32 s58, 0, {1 << (rnd-1)}")
    A("s_or_b32 s63, s63, s58")
    A("s_cmp_lg_u32 s58, 0")
    A(f"s_cbranch_scc1 {skip}")
    o_store(A, T + 16, qf)
    A.label(skip)

def o_addr_setup(A):
    pass

def o_store(A, src, qf):
    t = PB[0] + 6
    A(f"v_and_b32 v{t}, 15, v2")
    A(f"v_lshlrev_b32 v{t}, 4, v{t}")
    A(f"v_bfe_u32 v{t+1}, v2, 4, 1")
    A(f"v_lshl_add_u32 v{t}, v{t+1}, 10, v{t}")
    A(f"v_lshrrev_b32 v{t+1}, 5, v2")
    A(f"v_lshl_add_u32 v{t}, v{t+1}, 8, v{t}")
    A(f"s_add_u32 s58, s66, {qf*65536}")
    A(f"buffer_store_dwordx4 {vr(src,4)}, v{t}, s[32:35], s58 offen sc1")
    A(f"buffer_store_dwordx4 {vr(src+4,4)}, v{t}, s[32:35], s58 offen offset:512 sc1")

def o_flag(A, qf, bit, tmp):
    skip = A.newlabel("Lskf")
    if bit:
        A(f"s_bitcmp1_b32 s63, {bit-1}")
        A(f"s_cbranch_scc1 {skip}")
    A(f"v_mov_b32 v{tmp}, s60"); A(f"v_mov_b32 v{tmp+1}, s61"); A(f"v_mov_b32 v{tmp+2}, 0")
    A(f"s_add_u32 s58, s67, {qf*32*128}")
    A("s_waitcnt vmcnt(0)")
    A("s_mov_b64 exec, 1")
    A(f"buffer_store_dwordx2 {vr(tmp,2)}, v{tmp+2}, s[32:35], s58 offen sc1")
    A("s_mov_b64 exec, -1")
    A.label(skip)

def attn_slow(A, QFr, s_qb, s_kvb, OUT):
    KF, VF, S, PF, Oo = 32, 40, 48, 64, 80
    M, Lr, T, D = 96, 97, 98, 100
    A("v_and_b32 v4, 31, v2")
    A("v_lshrrev_b32 v5, 5, v2")
    A("v_lshlrev_b32 v5, 2, v5")
    A("v_sub_u32 v4, v4, v5")
    A(f"s_sub_u32 s52, {s_qb}, 8")
    A("s_max_i32 s52, s52, 0")
    A(f"v_mov_b32 v{M}, {NEGBIG:#x}")
    A(f"v_mov_b32 v{T+1}, {NEGBIG:#x}")
    A(f"v_mov_b32 v{Lr}, 0")
    for i in range(16):
        A(f"v_mov_b32 v{Oo+i}, 0")
    A("s_movk_i32 s57, 256")
    for ps in range(2):
        A("s_mov_b32 s53, s52")
        lp = A.newlabel("Lat")
        A.label(lp)
        A("s_lshl_b32 s54, s53, 12")
        A(f"s_add_u32 s54, s54, {s_kvb}")
        A(f"buffer_load_dwordx4 {vr(KF,4)}, v3, s[32:35], s54 offen sc1")
        A(f"buffer_load_dwordx4 {vr(KF+4,4)}, v3, s[32:35], s54 offen offset:1024 sc1")
        if ps:
            A(f"buffer_load_dwordx4 {vr(VF,4)}, v3, s[32:35], s54 offen offset:2048 sc1")
            A(f"buffer_load_dwordx4 {vr(VF+4,4)}, v3, s[32:35], s54 offen offset:3072 sc1")
        A(f"s_sub_u32 s55, {s_qb}, s53")
        A("s_lshl_b32 s55, s55, 5")
        A(f"v_add_u32 v{D}, s55, v4")
        A("s_waitcnt vmcnt(0)")
        mfma32(A, S, KF, QFr, "0")
        mfma32(A, S, KF + 4, QFr + 4)
        A("s_nop 15")
        for r in range(16):
            ko = 8 * (r // 4) + r % 4
            A(f"v_subrev_u32 v{T}, {ko}, v{D}")
            A(f"v_cmp_gt_u32 vcc, s57, v{T}")
            A("s_nop 1")
            A(f"v_cndmask_b32 v{S+r}, v{T+1}, v{S+r}, vcc")
            if ps == 0:
                A(f"v_max_f32 v{M}, v{M}, v{S+r}")
            else:
                A(f"v_sub_f32 v{S+r}, v{S+r}, v{M}")
                A(f"v_exp_f32 v{S+r}, v{S+r}")
                A("s_nop 0")
                A(f"v_add_f32 v{Lr}, v{Lr}, v{S+r}")
        if ps:
            for i in range(8):
                A(f"v_cvt_pk_bf16_f32 v{PF+i}, v{S+2*i}, v{S+2*i+1}")
            A("s_nop 1")
            mfma32(A, Oo, VF, PF)
            mfma32(A, Oo, VF + 4, PF + 4)
        A("s_add_u32 s53, s53, 1")
        A(f"s_cmp_le_u32 s53, {s_qb}")
        A(f"s_cbranch_scc1 {lp}")
        R = M if ps == 0 else Lr
        A(f"v_mov_b32 v{T}, v{R}")
        A("s_nop 1")
        A(f"v_permlane32_swap_b32 v{T}, v{R}")
        A("s_nop 1")
        if ps == 0:
            A(f"v_max_f32 v{M}, v{M}, v{T}")
        else:
            A(f"v_add_f32 v{Lr}, v{Lr}, v{T}")
    A(f"v_rcp_f32 v{Lr}, v{Lr}")
    A("s_nop 15")
    for i in range(16):
        A(f"v_mul_f32 v{Oo+i}, v{Oo+i}, v{Lr}")
    for i in range(8):
        A(f"v_cvt_pk_bf16_f32 v{OUT+i}, v{Oo+2*i}, v{Oo+2*i+1}")

def acc(w, tt): return ACC + 4 * (w * 4 + tt)

def transition_kv(A):
    read_ctl1(A, 200)
    A("s_nop 3")
    pairs16 = []; pairs32 = []
    for T in range(2):
        for f in range(2):
            b = KL + 16 * T + 4 * f
            for j in range(2):
                A(f"v_cvt_pk_bf16_f32 v{b+j}, v{acc(2+f,2*T)+2*j}, v{acc(2+f,2*T)+2*j+1}")
                A(f"v_cvt_pk_bf16_f32 v{b+2+j}, v{acc(2+f,2*T+1)+2*j}, v{acc(2+f,2*T+1)+2*j+1}")
                pairs16.append((b + j, b + 2 + j))
    for T in range(2):
        for f in range(2):
            b = KL + 16 * T + 8 + 4 * f
            tt = 2 * T + f
            for j in range(2):
                A(f"v_cvt_pk_bf16_f32 v{b+j}, v{acc(4,tt)+2*j}, v{acc(4,tt)+2*j+1}")
                A(f"v_cvt_pk_bf16_f32 v{b+2+j}, v{acc(5,tt)+2*j}, v{acc(5,tt)+2*j+1}")
                pairs16.append((b + j, b + 2 + j)); pairs32.append((b + j, b + 2 + j))
    A("s_nop 1")
    for a, b in pairs16: A(f"v_permlane16_swap_b32 v{a}, v{b}")
    A("s_nop 1")
    for a, b in pairs32: A(f"v_permlane32_swap_b32 v{a}, v{b}")
    A("s_lshl_b32 s46, s41, 1")
    A("s_add_u32 s46, s46, s44")
    A("s_lshl_b32 s47, s40, 1")
    A("s_add_u32 s47, s47, s45")
    A("s_lshl_b32 s48, s46, 5")
    A("s_add_u32 s48, s48, s47")
    A("s_lshl_b32 s65, s48, 7")
    A(f"s_add_u32 s65, s65, {FKV_BASE}")
    A("s_lshl_b32 s64, s48, 13")
    A("s_add_u32 s49, s64, 4096")
    A("s_lshl_b32 s66, s40, 7")
    A("s_add_u32 s66, s66, s46")
    A("s_lshl_b32 s67, s66, 7")
    A(f"s_add_u32 s67, s67, {FO_BASE}")
    A("s_lshl_b32 s66, s66, 11")
    A(f"s_add_u32 s66, s66, {O_BASE}")
    A("s_mov_b32 s63, 0")
    A("v_lshlrev_b32 v3, 4, v2")
    A("s_waitcnt lgkmcnt(0)")
    take_ctl1(A, 200)
    A("s_nop 3")
    A("s_cmp_eq_u32 s62, 0")
    A("s_cbranch_scc1 L_kvst_g")
    for bits, lab in (("", None), ("sc1", "L_kvst_g")):
        if lab: A.label(lab)
        for i in range(8):
            A(f"buffer_store_dwordx4 {vr(KL+4*i,4)}, v3, s[32:35], s{64 if i < 4 else 49} offen offset:{1024*(i%4)} {bits}")
        if not lab: A("s_branch L_kvst_done")
    A.label("L_kvst_done")

def kv_flag(A, tmp):
    g = A.newlabel("Lkfg"); d = A.newlabel("Lkfd")
    A(f"v_mov_b32 v{tmp}, s60"); A(f"v_mov_b32 v{tmp+1}, s61"); A(f"v_mov_b32 v{tmp+2}, 0")
    A("s_waitcnt vmcnt(0)")
    A("s_mov_b64 exec, 1")
    A("s_cmp_eq_u32 s62, 0")
    A(f"s_cbranch_scc1 {g}")
    A(f"buffer_store_dwordx2 {vr(tmp,2)}, v{tmp+2}, s[32:35], s65 offen")
    A(f"s_branch {d}")
    A.label(g)
    A(f"buffer_store_dwordx2 {vr(tmp,2)}, v{tmp+2}, s[32:35], s65 offen sc1")
    A.label(d)
    A("s_mov_b64 exec, -1")

def phase2(A, p):
    A(f"s_mov_b32 s56, {QSCALE:#x}")
    A(f"s_mov_b32 s57, {QSCALE:#x}")
    for i in range(16):
        A(f"v_pk_mul_f32 {vr(ACC+2*i,2)}, {vr(ACC+2*i,2)}, s[56:57]")
    pairs = []
    for T in range(2):
        for f in range(2):
            b = QF + 8 * (2 * p + T) + 4 * f
            for j in range(2):
                A(f"v_cvt_pk_bf16_f32 v{b+j}, v{acc(f,2*T)+2*j}, v{acc(f,2*T)+2*j+1}")
                A(f"v_cvt_pk_bf16_f32 v{b+2+j}, v{acc(f,2*T+1)+2*j}, v{acc(f,2*T+1)+2*j+1}")
                pairs.append((b + j, b + 2 + j))
    A("s_nop 1")
    for a, b in pairs: A(f"v_permlane16_swap_b32 v{a}, v{b}")
    A("s_lshl_b32 s58, s44, 13")
    A("v_add_u32 v0, s58, v3")
    for k in range(4):
        A(f"ds_write_b128 v0, {vr(QF+16*p+4*k,4)} offset:{p*4096 + k*1024}")
    A("v_lshrrev_b32 v1, 4, v2")
    A("v_xor_b32 v1, v1, v2")
    A("v_and_b32 v1, 1, v1")
    A("v_add_u32 v1, -1, v1")
    A("v_and_b32 v1, 0x3f803f80, v1")
    for i in range(4): A(f"v_mov_b32 v{ONES[0]+i}, v1")
    A("s_cmp_ge_u32 s40, 1")
    A("s_cselect_b32 s56, -1, 0")
    A("s_cmp_ge_u32 s40, 2")
    A("s_cselect_b32 s57, -1, 0")
    for i in range(4): A(f"v_and_b32 v{ONES[1]+i}, s56, v1")
    for i in range(4): A(f"v_and_b32 v{ONES[2]+i}, s57, v1")
    A("s_waitcnt lgkmcnt(0)")
    A("s_barrier")
    for k in range(4):
        A(f"ds_read_b128 {vr(QF+16*(1-p)+4*k,4)}, v0 offset:{(1-p)*4096 + k*1024}")
    stamp(A, 2)
    T = Tiles(A, set())
    K0, K1 = KL, KL + 16
    o0 = ONES[0]
    if p == 0:
        local = [(K0, 0, True, o0), (K0, 1, False, o0), (K1, 1, True, o0), (K0, 2, False, o0), (K1, 2, False, o0), (K0, 3, False, o0), (K1, 3, False, o0)]
        waits = {3: "s_waitcnt lgkmcnt(0)"}
    else:
        local = [(K0, 2, True, o0), (K0, 3, False, o0), (K1, 3, True, o0)]
        waits = {}
    def h_flag():
        kv_flag(A, R1)
    def h_b18():
        A("s_waitcnt lgkmcnt(0)")
        A("s_barrier")
    T.run(local, hooks={1: h_b18, 2: h_flag}, waits=waits)
    stamp(A, 3)
    tb_make(A)
    A(f"v_mov_b32 v{R1+2}, 0")
    A("s_cmp_ge_u32 s40, 1")
    A("s_cselect_b32 s52, 256, 0")
    A("s_cmp_ge_u32 s40, 2")
    A("s_cselect_b32 s53, 512, 0")
    A("s_sub_u32 s52, s65, s52")
    A("s_sub_u32 s53, s65, s53")
    A("s_mov_b32 s54, 0")
    lp = A.newlabel("Lpk"); go = A.newlabel("Lpkg")
    A.label(lp)
    A(f"buffer_load_dwordx2 {vr(R1+4,2)}, v{R1+2}, s[32:35], s52 offen sc1")
    A(f"buffer_load_dwordx2 {vr(R1+6,2)}, v{R1+2}, s[32:35], s53 offen sc1")
    A("s_add_u32 s54, s54, 1")
    A(f"s_cmp_gt_u32 s54, {POLL_MAX}")
    A(f"s_cbranch_scc1 {go}")
    A("s_waitcnt vmcnt(0)")
    A(f"v_cmp_eq_u64 vcc, s[60:61], {vr(R1+4,2)}")
    A(f"v_cmp_eq_u64 s[56:57], s[60:61], {vr(R1+6,2)}")
    A("s_and_b64 vcc, vcc, s[56:57]")
    A(f"s_cbranch_vccz {lp}")
    A.label(go)
    A("s_waitcnt vmcnt(0)")
    stamp(A, 4)
    A("s_cmp_ge_u32 s40, 1")
    A("s_cselect_b32 s52, 0, 0x40000000")
    A("s_cmp_ge_u32 s40, 2")
    A("s_cselect_b32 s53, 0, 0x40000000")
    A("s_add_u32 s52, s52, s64"); A("s_sub_u32 s52, s52, 0x4000")
    A("s_add_u32 s53, s53, s64"); A("s_sub_u32 s53, s53, 0x8000")
    for base, sb in ((R1, "s52"), (R2, "s53")):
        for half in range(2):
            for i in range(4):
                A(f"buffer_load_dwordx4 {vr(base+16*half+4*i,4)}, v3, s[32:35], {sb} offen offset:{1024*i} sc1")
            if half == 0: A(f"s_add_u32 {sb}, {sb}, 4096")
    bias_make(A, True)
    a0, a1, b0, b1 = R1, R1 + 16, R2, R2 + 16
    o1, o2 = ONES[1], ONES[2]
    if p == 0:
        part1 = [(a0, 0, False, o1), (a0, 1, False, o1), (a1, 0, False, o1), (a1, 1, False, o1), (b0, 0, True, o2), (b1, 0, False, o2), (b1, 1, True, o2)]
        w1 = {0: "s_waitcnt vmcnt(12)", 2: "s_waitcnt vmcnt(8)", 4: "s_waitcnt vmcnt(4)", 5: "s_waitcnt vmcnt(0)"}
        part2 = [(a0, 2, False, o1), (a1, 2, False, o1), (a0, 3, False, o1), (a1, 3, False, o1)]
    else:
        part1 = [(a0, 0, False, o1), (a0, 1, False, o1), (a1, 0, False, o1), (a1, 1, False, o1), (b0, 0, False, o2), (b0, 1, False, o2), (b1, 0, False, o2), (b1, 1, False, o2)]
        w1 = {0: "s_waitcnt vmcnt(12)", 2: "s_waitcnt vmcnt(8)", 4: "s_waitcnt vmcnt(4)", 6: "s_waitcnt vmcnt(0)"}
        part2 = [(a0, 2, False, o1), (a1, 2, False, o1), (b0, 2, True, o2), (b1, 2, False, o2), (a0, 3, False, o1), (a1, 3, False, o1), (b1, 3, True, o2)]
    T.run(part1, waits=w1)
    stamp(A, 5)
    merge(A, p, 1)
    def h_of1():
        o_flag(A, p, 1, OA)
    T.run(part2, hooks={2: h_of1})
    stamp(A, 6)
    merge(A, p, 2)
    o_flag(A, 2 + p, 2, OA)
    for rnd in (1, 2):
        qf = 2 * (rnd - 1) + p
        skip = A.newlabel("Lnf")
        A(f"s_bitcmp1_b32 s63, {rnd-1}")
        A(f"s_cbranch_scc0 {skip}")
        A("s_lshl_b32 s68, s40, 2")
        A(f"s_add_u32 s68, s68, {qf}")
        A("s_lshl_b32 s69, s46, 18")
        attn_slow(A, QF + 8 * qf, "s68", "s69", 24)
        o_store(A, 24, qf)
        o_flag(A, qf, 0, 16)
        A.label(skip)
    stamp(A, 7)

def phase3(A):
    D = 16; WF = [48, 64]; OF = 96
    A("s_and_b32 s46, s42, 3")
    A("s_lshr_b32 s47, s42, 2")
    A("s_lshl_b32 s48, s41, 2")
    A("s_add_u32 s48, s48, s46")
    A("s_lshl_b32 s49, s48, 5")
    A("s_lshl_b32 s50, s47, 4")
    A("s_add_u32 s49, s49, s50")
    A("s_lshl_b32 s50, s49, 7")
    A(f"s_add_u32 s50, s50, {FO_BASE}")
    A("s_lshl_b32 s49, s49, 11")
    A(f"s_add_u32 s49, s49, {O_BASE}")
    A("v_lshlrev_b32 v3, 4, v2")
    A("v_and_b32 v4, 15, v2")
    A("v_lshlrev_b32 v4, 7, v4")
    A("v_lshrrev_b32 v5, 4, v2")
    A("v_bfe_u32 v6, v2, 2, 2")
    A("v_lshrrev_b32 v7, 1, v5")
    A("v_lshlrev_b32 v7, 4, v7")
    A("v_and_b32 v8, 1, v5")
    A("v_lshl_add_u32 v7, v8, 2, v7")
    A("v_add_u32 v7, v7, v6")
    A("v_bfe_u32 v8, v7, 1, 2")
    A("v_lshlrev_b32 v7, 7, v7")
    A("v_lshl_add_u32 v7, v8, 5, v7")
    A("v_and_b32 v6, 3, v2")
    A("v_lshl_add_u32 v7, v6, 3, v7")
    A("s_lshl_b32 s51, s47, 16")
    A(f"s_add_u32 s51, s51, {WO_LDS}")
    A("v_add_u32 v10, s51, v7")
    for ct in range(1, 4):
        A(f"v_xor_b32 v{10+ct}, {32*ct}, v10")
    A("s_waitcnt vmcnt(0)")
    A("s_barrier")
    def wreads(s, st):
        f = WF[st]
        r = []
        for ct in range(4):
            r.append(f"ds_read_b64_tr_b16 {vr(f+4*ct,2)}, v{10+ct} offset:{s*4096}")
            r.append(f"ds_read_b64_tr_b16 {vr(f+4*ct+2,2)}, v{10+ct} offset:{s*4096+1024}")
        return r
    for r in wreads(0, 0): A(r)
    A("s_mov_b32 s54, 0")
    A.label("L_po")
    A(f"buffer_load_dwordx2 v[6:7], v4, s[32:35], s50 offen sc1")
    A("s_add_u32 s54, s54, 1")
    A(f"s_cmp_gt_u32 s54, {POLL_MAX}")
    A("s_cbranch_scc1 L_pog")
    A("s_waitcnt vmcnt(0)")
    A("v_cmp_ne_u64 vcc, s[60:61], v[6:7]")
    A("s_cbranch_vccnz L_po")
    A.label("L_pog")
    A("s_waitcnt vmcnt(0)")
    stamp(A, 8)
    if O.stamps: A("s_waitcnt lgkmcnt(0)")
    for k in range(32):
        A(f"buffer_load_dwordx4 {vr(OF+4*k,4)}, v3, s[32:35], s49 offen offset:{(k%4)*1024} sc1")
        if k % 4 == 3: A("s_add_u32 s49, s49, 4096")
    for s in range(16):
        st = s % 2
        R = wreads(s + 1, 1 - st) if s < 15 else []
        issued = 0
        for i in range(8):
            ct, hf = i // 2, i % 2
            w = []
            if i < 2: w.append(f"vmcnt({31 - (2*s+hf)})")
            if hf == 0: w.append(f"lgkmcnt({6 - 2*ct + issued})")
            if w: A("s_waitcnt " + " ".join(w))
            mfma16(A, D + 4 * (hf * 4 + ct), WF[st] + 4 * ct, OF + 4 * (2 * s + hf), "0" if s == 0 else None)
            if R: A(R[i]); issued += 1
    stamp(A, 9)
    A("s_nop 7")
    A("s_lshl_b32 s50, s46, 13")
    A("v_add_u32 v4, s50, v3")
    A("s_cmp_eq_u32 s47, 0")
    A("s_cbranch_scc1 L_out_lo")
    for i in range(8):
        A(f"ds_write_b128 v4, {vr(D+4*i,4)} offset:{1024*i}")
    A("s_waitcnt lgkmcnt(0)")
    A("s_barrier")
    A("s_branch L_fin")
    A.label("L_out_lo")
    A("v_and_b32 v5, 15, v2")
    A("s_lshl_b32 s50, s48, 5")
    A("v_add_u32 v5, s50, v5")
    A("v_lshlrev_b32 v5, 11, v5")
    A("v_bfe_u32 v6, v2, 4, 1")
    A("v_lshl_add_u32 v5, v6, 5, v5")
    A("v_lshrrev_b32 v6, 5, v2")
    A("v_lshl_add_u32 v5, v6, 4, v5")
    A("s_lshl_b32 s50, s40, 7")
    A("v_add_u32 v5, s50, v5")
    A("s_mov_b32 s51, 0x8000")
    A("s_barrier")
    for i in range(8):
        A(f"ds_read_b128 {vr(OF+4*i,4)}, v4 offset:{1024*i}")
    A("s_waitcnt lgkmcnt(0)")
    for i in range(32):
        A(f"v_add_f32 v{D+i}, v{D+i}, v{OF+i}")
    P = 64
    for hf in range(2):
        for cp in range(2):
            b = P + 8 * hf + 4 * cp
            for j in range(2):
                a0 = D + 4 * (hf * 4 + 2 * cp) + 2 * j; a1 = D + 4 * (hf * 4 + 2 * cp + 1) + 2 * j
                A(f"v_cvt_pk_bf16_f32 v{b+j}, v{a0}, v{a0+1}")
                A(f"v_cvt_pk_bf16_f32 v{b+2+j}, v{a1}, v{a1+1}")
    A("s_nop 1")
    for q in range(4):
        A(f"v_permlane16_swap_b32 v{P+4*q}, v{P+4*q+2}")
        A(f"v_permlane16_swap_b32 v{P+4*q+1}, v{P+4*q+3}")
    A("s_nop 1")
    for hf in range(2):
        for cp in range(2):
            A(f"buffer_store_dwordx4 {vr(P+8*hf+4*cp,4)}, v5, s[28:31], {'s51' if hf else '0'} offen offset:{64*cp}")

def helper_mid(A, is_x):
    read_ctl1(A, 24)
    A("s_waitcnt lgkmcnt(0)")
    take_ctl1(A, 24)
    A("s_barrier")
    A("s_barrier")
    if is_x: wo_issue(A, WO_PART["E"])

def main(out):
    A = Asm()
    name = "standalone__sliding_block__prompt_kernel"
    A.raw(HEADER_COMMENT.rstrip())
    A.raw(f"; @launch grid=(256,1,1) block=(512,1,1) lds=163840")
    A.raw('.amdgcn_target "amdgcn-amd-amdhsa--gfx950"')
    A.raw(".text")
    kernel_begin(A, name)
    prologue(A)
    A("s_cmp_eq_u32 s42, 4")
    A("s_cbranch_scc1 L_xl")
    A("s_cmp_eq_u32 s42, 7")
    A("s_cbranch_scc1 L_aux")
    A("s_cmp_ge_u32 s42, 5")
    A("s_cbranch_scc1 L_wl")
    p1.compute_setup(A)
    tb_make(A)
    bias_make(A, False)
    srds(A)
    p1.compute(A)
    stamp(A, 1)
    transition_kv(A)
    A("s_cmp_eq_u32 s45, 1")
    A("s_cbranch_scc1 L_p1")
    phase2(A, 0)
    A("s_branch L_p3")
    A.label("L_p1")
    phase2(A, 1)
    A("s_branch L_p3")
    A.label("L_xl")
    xloader(A)
    helper_mid(A, True)
    A("s_branch L_p3")
    A.label("L_wl")
    wloader(A)
    helper_mid(A, False)
    A("s_branch L_p3")
    A.label("L_aux")
    aux(A)
    helper_mid(A, False)
    A.label("L_p3")
    phase3(A)
    A.label("L_fin")
    if O.stamps:
        A("s_waitcnt vmcnt(0)")
        stamp(A, 10)
        A("s_waitcnt lgkmcnt(0)")
        A("s_lshl_b32 s46, s2, 3")
        A("s_add_u32 s46, s46, s42")
        A("s_lshl_b32 s46, s46, 6")
        A(f"s_add_u32 s46, s46, {ST_BASE}")
        A("v_mov_b32 v3, 0")
        A("s_mov_b64 exec, 1")
        for i in range(11):
            A(f"v_mov_b32 v4, s{80+2*i}")
            A(f"buffer_store_dword v4, v3, s[32:35], s46 offen offset:{4*i}")
        A("v_mov_b32 v4, s62")
        A(f"buffer_store_dword v4, v3, s[32:35], s46 offen offset:44")
    A.label("L_end")
    A("s_endpgm")
    A.raw('.section .rodata,"a"')
    kernel_desc(A, name, 256, 102, 256)
    open(out, "w").write(A.text())

if __name__ == "__main__":
    for a in sys.argv[2:]:
        k, v = a.split("=")
        setattr(O, k, eval(v))
    main(sys.argv[1])
```

```python
import sys, struct
from asmlib import *
import p1
from p1 import SLOT, ACC, mfma16

def f32(x): return struct.unpack("<I", struct.pack("<f", x))[0]

KV_BASE = 0
O_BASE = 8 << 20
FKV_BASE = 12 << 20
FO_BASE = 13 << 20
XT_BASE = 14 << 20
ST_BASE = 16 << 20
WS_BYTES = 268435456
QSCALE = 0x3e8293ee
NEGBIG = 0xf149f2ca
BIGB = 1e30
WO_LDS = 32768
CTL1 = 162816
M_O = 0
M_L = 16384
CTL2 = 17408
POLL_MAX = 400000

class Opt:
    stamps = False
    touch = {-1: 1, 1: 1, 5: 1, 9: 1}
    force_slow = False
    force_global = False
    codepf = True
O = Opt()

def mfma32(A, d, a, b, c=None):
    cs = vr(d, 16) if c is None else (c if isinstance(c, str) else vr(c, 16))
    A(f"v_mfma_f32_32x32x16_bf16 {vr(d,16)}, {vr(a,4)}, {vr(b,4)}, {cs}")

nstamp = [0]
def stamp(A, idx):
    if O.stamps:
        A(f"s_memrealtime s[{80+2*idx}:{81+2*idx}]")

def prologue(A):
    A("s_cmp_ge_u32 s2, 256")
    A("s_cbranch_scc1 L_end")
    A("s_load_dwordx8 s[4:11], s[0:1], 0")
    A("s_load_dwordx4 s[12:15], s[0:1], 32")
    stamp(A, 0)
    A("s_and_b32 s43, s2, 7")
    A("s_lshr_b32 s44, s2, 3")
    A("s_and_b32 s40, s44, 15")
    A("s_lshr_b32 s44, s44, 4")
    A("s_lshl_b32 s41, s43, 1")
    A("s_add_u32 s41, s41, s44")
    A("v_lshrrev_b32 v1, 6, v0")
    A("v_and_b32 v2, 63, v0")
    A("v_readfirstlane_b32 s42, v1")

def srds(A):
    A("s_waitcnt lgkmcnt(0)")
    for base, ptr, n in ((16, 4, 0x400000), (20, 6, 0x600000), (24, 8, 0x200000), (28, 10, 0x400000), (32, 14, WS_BYTES), (36, 12, 256)):
        A(f"s_mov_b32 s{base}, s{ptr}")
        A(f"s_mov_b32 s{base+1}, s{ptr+1}")
        A(f"s_mov_b32 s{base+2}, {n:#x}")
        A(f"s_mov_b32 s{base+3}, 0x20000")

def wo_voff(A, dst):
    A("v_lshrrev_b32 v3, 3, v2")
    A("v_and_b32 v4, 7, v2")
    A("v_and_b32 v5, 6, v3")
    A("v_xor_b32 v4, v4, v5")
    A("v_lshlrev_b32 v3, 11, v3")
    A("v_lshl_add_u32 v3, v4, 4, v3")
    A("s_lshl_b32 s44, s40, 7")
    A(f"v_add_u32 v{dst}, s44, v3")

def wo_issue(A, pieces, add_sgpr=None):
    for pc in pieces:
        if add_sgpr:
            A(f"s_add_u32 m0, s51, {WO_LDS + pc*1024}")
            A(f"s_add_u32 s48, s52, {pc*16384}")
        else:
            A(f"s_mov_b32 m0, {WO_LDS + pc*1024}")
            A(f"s_mov_b32 s48, {pc*16384}")
        A(f"buffer_load_dwordx4 v12, s[24:27], s48 offen lds")

WO_PART = {"A": list(range(88, 127)), "B": list(range(8, 48)), "C": list(range(48, 88)), "D": list(range(0, 8)), "E": [127]}

def touch_setup(A):
    A("s_lshl_b32 s55, s2, 3")
    A("v_and_b32 v5, 7, v2")
    A("v_add_u32 v5, s55, v5")
    A("v_lshlrev_b32 v5, 11, v5")
    A("v_lshrrev_b32 v6, 3, v2")
    A("v_lshl_add_u32 v20, v6, 7, v5")
    A("s_lshr_b32 s52, s2, 3")
    A("s_and_b32 s53, s2, 7")
    A("v_lshrrev_b32 v5, 4, v2")
    A("v_lshlrev_b32 v5, 6, v5")
    A("v_bfe_u32 v6, v2, 3, 1")
    A("v_add_u32 v5, v5, v6")
    A("s_lshl_b32 s55, s52, 1")
    A("v_add_u32 v5, s55, v5")
    A("v_mul_u32_u24 v5, 0x1800, v5")
    A("v_bfe_u32 v6, v2, 1, 2")
    A("v_lshl_add_u32 v5, v6, 11, v5")
    A("v_and_b32 v7, 1, v2")
    A("v_lshl_add_u32 v5, v7, 7, v5")
    A("s_lshl_b32 s55, s53, 8")
    A("v_add_u32 v21, s55, v5")
    A("v_mov_b32 v7, 0x7fffffff")
    A("v_cmp_eq_u32 vcc, 3, v6")
    A("s_nop 1")
    A("v_cndmask_b32 v21, v21, v7, vcc")
    A("v_cmp_le_u32 vcc, 32, v2")
    A("s_nop 1")
    A("v_cndmask_b32 v20, v20, v7, vcc")
    A("v_lshlrev_b32 v22, 7, v2")

def xloader(A):
    A("v_lshrrev_b32 v3, 3, v2")
    A("v_and_b32 v4, 7, v2")
    A("v_lshrrev_b32 v5, 1, v3")
    A("v_xor_b32 v6, v5, v4")
    A("v_xor_b32 v7, 4, v6")
    A("s_lshl_b32 s44, s40, 7")
    A("v_add_u32 v5, s44, v3")
    A("v_lshlrev_b32 v5, 11, v5")
    A("v_lshl_add_u32 v10, v6, 4, v5")
    A("v_lshl_add_u32 v11, v7, 4, v5")
    srds(A)
    def issue(c, slot):
        for p in range(16):
            if isinstance(slot, int):
                A(f"s_mov_b32 m0, {slot + p*1024}")
                A(f"s_mov_b32 s48, {c*128 + p*16384}")
            else:
                A(f"s_add_u32 m0, {slot}, {p*1024}")
                A(f"s_add_u32 s48, s47, {p*16384}")
            A(f"buffer_load_dwordx4 v{10+p%2}, s[16:19], s48 offen lds")
    issue(0, 0); issue(1, SLOT)
    wo_voff(A, 12)
    A("s_waitcnt vmcnt(16)")
    A("s_barrier")
    issue(2, 2 * SLOT)
    A("s_mov_b32 s49, 0")
    A("s_mov_b32 s47, 384")
    A("s_mov_b32 s50, 13")
    A.label("L_xl_loop")
    A("s_waitcnt vmcnt(16)")
    A("s_barrier")
    issue(None, "s49")
    A("s_add_u32 s47, s47, 128")
    A(f"s_add_u32 s49, s49, {SLOT}")
    A(f"s_cmp_ge_u32 s49, {3*SLOT}")
    A("s_cselect_b32 s49, 0, s49")
    A("s_sub_u32 s50, s50, 1")
    A("s_cmp_lg_u32 s50, 0")
    A("s_cbranch_scc1 L_xl_loop")
    wo_issue(A, WO_PART["A"][:15])
    A("s_waitcnt vmcnt(31)")
    A("s_barrier")
    wo_issue(A, WO_PART["B"][:16])
    A("s_waitcnt vmcnt(31)")
    A("s_barrier")
    wo_issue(A, WO_PART["C"][:16])
    A("s_barrier")
    wo_issue(A, WO_PART["D"])

def wloader(A):
    A("v_lshrrev_b32 v3, 3, v2")
    A("v_and_b32 v4, 7, v2")
    A("v_and_b32 v5, 2, v3")
    A("v_xor_b32 v6, v5, v4")
    A("v_xor_b32 v7, 4, v6")
    A("s_sub_u32 s43, s42, 5")
    A("s_lshl_b32 s44, s43, 5")
    A("v_add_u32 v5, s44, v3")
    A("v_mul_u32_u24 v5, 0x1800, v5")
    A("s_lshl_b32 s44, s41, 7")
    A("v_add_u32 v5, s44, v5")
    A("v_lshl_add_u32 v10, v6, 4, v5")
    A("v_lshl_add_u32 v11, v7, 4, v5")
    A("s_lshl_b32 s46, s43, 12")
    A("s_add_u32 s46, s46, 0x4000")
    srds(A)
    def issue(c, slot):
        for part in range(3):
            for kg in range(4):
                if isinstance(slot, int):
                    A(f"s_add_u32 m0, s46, {slot + part*8192 + kg*1024}")
                    A(f"s_mov_b32 s48, {c*0x60000 + kg*8*6144 + part*2048}")
                else:
                    A(f"s_add_u32 m0, {slot}, {part*8192 + kg*1024}")
                    A(f"s_add_u32 s48, s47, {kg*8*6144 + part*2048}")
                A(f"buffer_load_dwordx4 v{10+kg%2}, s[20:23], s48 offen lds")
    issue(0, 0); issue(1, SLOT)
    wo_voff(A, 12)
    A("s_mul_i32 s51, s43, 12288")
    A("s_mul_i32 s52, s43, 196608")
    A("s_waitcnt vmcnt(12)")
    A("s_barrier")
    issue(2, 2 * SLOT)
    A("s_mov_b32 s49, s46")
    A(f"s_mov_b32 s47, {3*0x60000}")
    A("s_mov_b32 s50, 13")
    A.label("L_wl_loop")
    A("s_waitcnt vmcnt(12)")
    A("s_barrier")
    issue(None, "s49")
    A("s_add_u32 s47, s47, 0x60000")
    A(f"s_add_u32 s49, s49, {SLOT}")
    A(f"s_cmp_ge_u32 s49, {3*SLOT}")
    A("s_cselect_b32 s49, s46, s49")
    A("s_sub_u32 s50, s50, 1")
    A("s_cmp_lg_u32 s50, 0")
    A("s_cbranch_scc1 L_wl_loop")
    wo_issue(A, WO_PART["A"][15:27], True)
    A("s_waitcnt vmcnt(24)")
    A("s_barrier")
    wo_issue(A, WO_PART["B"][16:28], True)
    A("s_waitcnt vmcnt(24)")
    A("s_barrier")
    wo_issue(A, WO_PART["C"][16:28], True)
    A("s_barrier")

def code_prefetch(A):
    A("s_getpc_b64 s[70:71]")
    A.label("L_pc")
    A("s_sub_u32 s70, s70, L_pc-standalone__sliding_block__prompt_kernel")
    A("s_subb_u32 s71, s71, 0")
    A("v_lshlrev_b32 v22, 7, v2")
    A("v_mov_b32 v23, L_code_end-standalone__sliding_block__prompt_kernel-4")
    for i in range(5):
        A(f"v_add_u32 v{32+i}, {8192*i}, v22")
        A(f"v_min_u32 v{32+i}, v{32+i}, v23")
        A(f"global_load_dword v{40+i}, v{32+i}, s[70:71]")

def aux(A):
    if O.codepf: code_prefetch(A)
    touch_setup(A)
    A("s_memrealtime s[60:61]")
    A("s_getreg_b32 s63, hwreg(HW_REG_XCC_ID)")
    srds(A)
    A("s_and_b32 s63, s63, 7")
    A("s_andn2_b32 s60, s60, 15")
    A("s_or_b32 s60, s60, 8")
    A("v_mov_b32 v24, s60"); A("v_mov_b32 v25, s61"); A("v_mov_b32 v26, 0"); A("v_mov_b32 v27, 0")
    A("v_mov_b32 v8, 0")
    st = {"c": 2}
    def touch():
        c = st["c"]; st["c"] += 4
        if c > 15: return
        c = min(c, 12)
        A(f"s_mov_b32 s57, {c*128}")
        A(f"s_mov_b32 s58, {c*0x60000}")
        A("buffer_load_dword v30, v21, s[20:23], s58 offen")
        A("buffer_load_dword v31, v20, s[16:19], s57 offen")
    A("s_sleep 4")
    for i in range(O.touch.get(-1, 0)): touch()
    A("s_mov_b64 exec, 1")
    A("buffer_atomic_cmpswap_x2 v[24:27], v8, s[36:39], 0 offen sc0 sc1")
    A("s_mov_b64 exec, -1")
    for c in range(17):
        if c == 16:
            A("s_waitcnt lgkmcnt(0)")
        A("s_barrier")
        if O.touch.get(c, 0):
            A("s_sleep 6")
            for i in range(O.touch[c]): touch()
        if c == 4:
            A("s_waitcnt vmcnt(0)")
            A("v_readfirstlane_b32 s56, v24")
            A("v_readfirstlane_b32 s57, v25")
            A("s_cmp_eq_u32 s56, 0")
            A("s_cselect_b32 s60, s60, s56")
            A("s_cselect_b32 s61, s61, s57")
            A("s_or_b32 s56, s60, s63")
            A("v_mov_b32 v24, s56"); A("v_mov_b32 v25, s61")
            A("s_lshl_b32 s57, s41, 4")
            A("s_add_u32 s57, s57, s40")
            A("s_lshl_b32 s57, s57, 7")
            A(f"s_add_u32 s59, s57, {XT_BASE}")
            A("s_mov_b64 exec, 1")
            A("buffer_store_dwordx2 v[24:25], v8, s[32:35], s59 offen sc1")
            A("s_mov_b64 exec, -1")
        if c == 9:
            A("s_lshl_b32 s57, s2, 13")
            A("buffer_load_dword v30, v22, s[24:27], s57 offen")
            A("s_lshl_b32 s57, s41, 6")
            A("s_lshl_b32 s58, s40, 1")
            A("s_add_u32 s57, s57, s58")
            A("s_lshl_b32 s58, s57, 13")
            for k in range(4):
                off = (k // 2) * 32 * 8192 + (k % 2) * 8192
                A(f"s_add_u32 s54, s58, {KV_BASE + off}")
                A("buffer_load_dword v30, v22, s[32:35], s54 offen")
            A("v_and_b32 v5, 1, v2")
            A("v_bfe_u32 v6, v2, 1, 1")
            A("v_lshl_add_u32 v5, v6, 5, v5")
            A("v_lshlrev_b32 v5, 7, v5")
            A("s_lshl_b32 s58, s57, 7")
            A(f"s_add_u32 s58, s58, {FKV_BASE}")
            A("buffer_load_dword v30, v5, s[32:35], s58 offen")
            A("buffer_load_dwordx2 v[26:27], v8, s[32:35], s59 offen offset:128 sc1")
            A("buffer_load_dwordx2 v[28:29], v8, s[32:35], s59 offen offset:256 sc1")
        if c == 13:
            A("s_waitcnt vmcnt(0)")
            A("v_cmp_eq_u64 vcc, v[24:25], v[26:27]")
            A("v_cmp_eq_u64 s[54:55], v[24:25], v[28:29]")
            A("s_cmp_ge_u32 s40, 15")
            A("s_cselect_b32 s56, 1, vcc_lo")
            A("s_cmp_ge_u32 s40, 14")
            A("s_cselect_b32 s57, 1, s54")
            A("s_and_b32 s56, s56, s57")
            A("s_and_b32 s56, s56, 1")
            if O.force_global:
                A("s_mov_b32 s56, 0")
            A("v_mov_b32 v24, s60"); A("v_mov_b32 v25, s61"); A("v_mov_b32 v26, s56"); A("v_mov_b32 v27, 0")
            A(f"v_mov_b32 v5, {CTL1}")
            A("ds_write_b128 v5, v[24:27]")
    A("v_mov_b32 v24, 0")
    A("v_lshlrev_b32 v5, 2, v2")
    A(f"ds_write_b32 v5, v24 offset:{CTL2}")

def read_ctl1(A, t):
    A(f"v_mov_b32 v1, {CTL1}")
    A(f"ds_read_b128 {vr(t,4)}, v1")

def take_ctl1(A, t):
    A(f"v_readfirstlane_b32 s60, v{t}")
    A(f"v_readfirstlane_b32 s61, v{t+1}")
    A(f"v_readfirstlane_b32 s62, v{t+2}")

ONES = [4, 8, 12]
OA = 16; LA = 80; PB = [96, 104]; KL = 112; QF = 144; SB = [176, 192]; R1 = 208; R2 = 112; BIAS = 240

def bias_make(A, upper):
    for r in range(16):
        ko = 8 * (r // 4) + r % 4
        c = (0.5 - ko) * BIGB
        if not upper:
            A(f"v_add_f32 v{BIAS+r}, {f32(c):#x}, v1")
        else:
            A(f"v_sub_f32 v{BIAS+r}, {f32(-c):#x}, v1")
    for r in range(16):
        A(f"v_min_f32 v{BIAS+r}, 0, v{BIAS+r}")

def tb_make(A):
    A("v_and_b32 v1, 31, v2")
    A("v_lshrrev_b32 v0, 5, v2")
    A("v_lshlrev_b32 v0, 2, v0")
    A("v_sub_u32 v1, v1, v0")
    A("v_cvt_f32_i32 v1, v1")
    A(f"v_mul_f32 v1, {f32(BIGB):#x}, v1")

class Tiles:
    def __init__(self, A, inited):
        self.A = A
        self.inited = inited
        self.n = 0
    def qk(self, t, tile, m):
        kv, qb, bias, ones = tile
        S = SB[t % 2]
        if m == 0:
            mfma32(self.A, S, kv, QF + 8 * qb, BIAS if bias else "0")
        else:
            mfma32(self.A, S, kv + 4, QF + 8 * qb + 4)
    def pv(self, t, tile, f):
        kv, qb, bias, ones = tile
        first = (f == 0 and qb not in self.inited)
        mfma32(self.A, OA + 16 * qb, kv + 8 + 4 * f, PB[t % 2] + 4 * f, "0" if first else None)
    def ls(self, t, tile, f):
        kv, qb, bias, ones = tile
        first = (f == 0 and qb not in self.inited)
        mfma16(self.A, LA + 4 * qb, ones, PB[t % 2] + 4 * f, "0" if first else None)
        if first: self.inited.add(qb)
    def run(self, tiles, hooks=None, waits=None):
        A = self.A
        hooks = hooks or {}; waits = waits or {}
        base = self.n
        if 0 in waits: A(waits[0])
        self.qk(base, tiles[0], 0); self.qk(base, tiles[0], 1)
        A("s_nop 11")
        for i, tile in enumerate(tiles):
            t = base + i
            S = SB[t % 2]; P = PB[t % 2]
            prev = tiles[i - 1] if i > 0 else None
            nxt = tiles[i + 1] if i + 1 < len(tiles) else None
            if i in hooks: hooks[i]()
            e = lambda r: A(f"v_exp_f32 v{S+r}, v{S+r}")
            c = lambda k: A(f"v_cvt_pk_bf16_f32 v{P+k}, v{S+2*k}, v{S+2*k+1}")
            e(0); e(1)
            if prev: self.pv(t - 1, prev, 1)
            for r in range(2, 6): e(r)
            if prev: self.ls(t - 1, prev, 1)
            e(6); e(7)
            if nxt:
                if (i + 1) in waits: A(waits[i + 1])
                self.qk(t + 1, nxt, 0)
            for k in range(4): c(k)
            e(8)
            if nxt: self.qk(t + 1, nxt, 1)
            for r in range(9, 13): e(r)
            self.pv(t, tile, 0)
            for r in range(13, 16): e(r)
            c(4)
            self.ls(t, tile, 0)
            for k in range(5, 8): c(k)
        A("s_nop 1")
        t = base + len(tiles) - 1
        self.pv(t, tiles[-1], 1)
        self.ls(t, tiles[-1], 1)
        self.n = base + len(tiles)

def lds_wait(A, off, val, tmp):
    lp = A.newlabel("Lw")
    A.label(lp)
    A(f"ds_read_b32 v{tmp}, v0 offset:{off}")
    A("s_waitcnt lgkmcnt(0)")
    A(f"v_readfirstlane_b32 s58, v{tmp}")
    A(f"s_cmp_lt_u32 s58, {val}")
    A(f"s_cbranch_scc1 {lp}")

def merge(A, p, rnd):
    qf = 2 * (rnd - 1) + p; qs = 2 * (rnd - 1) + 1 - p
    T = SB[0]
    A("s_lshl_b32 s58, s44, 2")
    A("v_mov_b32 v0, s58")
    if rnd == 2:
        lds_wait(A, CTL2 + 16 + (1 - p) * 8, 1, PB[0])
    A("s_lshl_b32 s58, s44, 12")
    A(f"v_add_u32 v{PB[0]}, s58, v3")
    A("s_lshl_b32 s58, s44, 8")
    A(f"v_lshlrev_b32 v{PB[0]+1}, 2, v2")
    A(f"v_add_u32 v{PB[0]+1}, s58, v{PB[0]+1}")
    A(f"v_and_b32 v{PB[0]+2}, 16, v2")
    A(f"v_cmp_ne_u32 vcc, 0, v{PB[0]+2}")
    A("s_nop 7")
    A(f"v_cndmask_b32 v{PB[0]+3}, v{LA+4*qs}, v{LA+4*qs+1}, vcc")
    A(f"v_cndmask_b32 v{PB[0]+4}, v{LA+4*qf}, v{LA+4*qf+1}, vcc")
    for i in range(4):
        A(f"ds_write_b128 v{PB[0]}, {vr(OA+16*qs+4*i,4)} offset:{M_O + p*8192 + i*1024}")
    A(f"ds_write_b32 v{PB[0]+1}, v{PB[0]+3} offset:{M_L + p*512}")
    A(f"v_mov_b32 v{PB[0]+5}, {rnd}")
    A(f"ds_write_b32 v0, v{PB[0]+5} offset:{CTL2 + p*8}")
    lds_wait(A, CTL2 + (1 - p) * 8, rnd, PB[0] + 6)
    for i in range(4):
        A(f"ds_read_b128 {vr(T+4*i,4)}, v{PB[0]} offset:{M_O + (1-p)*8192 + i*1024}")
    A(f"ds_read_b32 v{PB[0]+3}, v{PB[0]+1} offset:{M_L + (1-p)*512}")
    A("s_waitcnt lgkmcnt(0)")
    A(f"ds_write_b32 v0, v{PB[0]+5} offset:{CTL2 + 16 + p*8}")
    Lr = PB[0] + 4
    A(f"v_add_f32 v{Lr}, v{Lr}, v{PB[0]+3}")
    Ob = OA + 16 * qf
    for i in range(16):
        A(f"v_add_f32 v{Ob+i}, v{Ob+i}, v{T+i}")
    A(f"v_rcp_f32 v{PB[0]+3}, v{Lr}")
    A(f"v_add_f32 v{T}, |v{Ob}|, |v{Ob+1}|")
    A(f"v_add_f32 v{T+1}, |v{Ob+2}|, |v{Ob+3}|")
    for i in range(4, 16, 2):
        A(f"v_add_f32 v{T}, v{T}, |v{Ob+i}|")
        A(f"v_add_f32 v{T+1}, v{T+1}, |v{Ob+i+1}|")
    A(f"v_add_f32 v{T}, v{T}, v{T+1}")
    A(f"v_cmp_le_f32 vcc, {f32(2.0**-30):#x}, v{Lr}")
    A(f"s_mov_b64 s[56:57], vcc")
    A(f"v_cmp_ge_f32 vcc, {f32(2.0**30):#x}, v{Lr}")
    A("s_and_b64 s[56:57], s[56:57], vcc")
    A(f"v_cmp_gt_f32 vcc, {f32(2.0**100):#x}, v{T}")
    A("s_and_b64 s[56:57], s[56:57], vcc")
    for i in range(16):
        A(f"v_mul_f32 v{Ob+i}, v{Ob+i}, v{PB[0]+3}")
    for i in range(8):
        A(f"v_cvt_pk_bf16_f32 v{T+16+i}, v{Ob+2*i}, v{Ob+2*i+1}")
    skip = A.newlabel("Lskip")
    A("s_cmp_eq_u64 s[56:57], -1")
    if O.force_slow:
        A("s_cmp_eq_u32 s40, 99")
    A(f"s_cselect_b32 s58, 0, {1 << (rnd-1)}")
    A("s_or_b32 s63, s63, s58")
    A("s_cmp_lg_u32 s58, 0")
    A(f"s_cbranch_scc1 {skip}")
    o_store(A, T + 16, qf)
    A.label(skip)

def o_addr_setup(A):
    pass

def o_store(A, src, qf):
    t = PB[0] + 6
    A(f"v_and_b32 v{t}, 15, v2")
    A(f"v_lshlrev_b32 v{t}, 4, v{t}")
    A(f"v_bfe_u32 v{t+1}, v2, 4, 1")
    A(f"v_lshl_add_u32 v{t}, v{t+1}, 10, v{t}")
    A(f"v_lshrrev_b32 v{t+1}, 5, v2")
    A(f"v_lshl_add_u32 v{t}, v{t+1}, 8, v{t}")
    A(f"s_add_u32 s58, s66, {qf*65536}")
    A(f"buffer_store_dwordx4 {vr(src,4)}, v{t}, s[32:35], s58 offen sc1")
    A(f"buffer_store_dwordx4 {vr(src+4,4)}, v{t}, s[32:35], s58 offen offset:512 sc1")

def o_flag(A, qf, bit, tmp):
    skip = A.newlabel("Lskf")
    if bit:
        A(f"s_bitcmp1_b32 s63, {bit-1}")
        A(f"s_cbranch_scc1 {skip}")
    A(f"v_mov_b32 v{tmp}, s60"); A(f"v_mov_b32 v{tmp+1}, s61"); A(f"v_mov_b32 v{tmp+2}, 0")
    A(f"s_add_u32 s58, s67, {qf*32*128}")
    A("s_waitcnt vmcnt(0)")
    A("s_mov_b64 exec, 1")
    A(f"buffer_store_dwordx2 {vr(tmp,2)}, v{tmp+2}, s[32:35], s58 offen sc1")
    A("s_mov_b64 exec, -1")
    A.label(skip)

def attn_slow(A, QFr, s_qb, s_kvb, OUT):
    KF, VF, S, PF, Oo = 32, 40, 48, 64, 80
    M, Lr, T, D = 96, 97, 98, 100
    A("v_and_b32 v4, 31, v2")
    A("v_lshrrev_b32 v5, 5, v2")
    A("v_lshlrev_b32 v5, 2, v5")
    A("v_sub_u32 v4, v4, v5")
    A(f"s_sub_u32 s52, {s_qb}, 8")
    A("s_max_i32 s52, s52, 0")
    A(f"v_mov_b32 v{M}, {NEGBIG:#x}")
    A(f"v_mov_b32 v{T+1}, {NEGBIG:#x}")
    A(f"v_mov_b32 v{Lr}, 0")
    for i in range(16):
        A(f"v_mov_b32 v{Oo+i}, 0")
    A("s_movk_i32 s57, 256")
    for ps in range(2):
        A("s_mov_b32 s53, s52")
        lp = A.newlabel("Lat")
        A.label(lp)
        A("s_lshl_b32 s54, s53, 12")
        A(f"s_add_u32 s54, s54, {s_kvb}")
        A(f"buffer_load_dwordx4 {vr(KF,4)}, v3, s[32:35], s54 offen sc1")
        A(f"buffer_load_dwordx4 {vr(KF+4,4)}, v3, s[32:35], s54 offen offset:1024 sc1")
        if ps:
            A(f"buffer_load_dwordx4 {vr(VF,4)}, v3, s[32:35], s54 offen offset:2048 sc1")
            A(f"buffer_load_dwordx4 {vr(VF+4,4)}, v3, s[32:35], s54 offen offset:3072 sc1")
        A(f"s_sub_u32 s55, {s_qb}, s53")
        A("s_lshl_b32 s55, s55, 5")
        A(f"v_add_u32 v{D}, s55, v4")
        A("s_waitcnt vmcnt(0)")
        mfma32(A, S, KF, QFr, "0")
        mfma32(A, S, KF + 4, QFr + 4)
        A("s_nop 15")
        for r in range(16):
            ko = 8 * (r // 4) + r % 4
            A(f"v_subrev_u32 v{T}, {ko}, v{D}")
            A(f"v_cmp_gt_u32 vcc, s57, v{T}")
            A("s_nop 1")
            A(f"v_cndmask_b32 v{S+r}, v{T+1}, v{S+r}, vcc")
            if ps == 0:
                A(f"v_max_f32 v{M}, v{M}, v{S+r}")
            else:
                A(f"v_sub_f32 v{S+r}, v{S+r}, v{M}")
                A(f"v_exp_f32 v{S+r}, v{S+r}")
                A("s_nop 0")
                A(f"v_add_f32 v{Lr}, v{Lr}, v{S+r}")
        if ps:
            for i in range(8):
                A(f"v_cvt_pk_bf16_f32 v{PF+i}, v{S+2*i}, v{S+2*i+1}")
            A("s_nop 1")
            mfma32(A, Oo, VF, PF)
            mfma32(A, Oo, VF + 4, PF + 4)
        A("s_add_u32 s53, s53, 1")
        A(f"s_cmp_le_u32 s53, {s_qb}")
        A(f"s_cbranch_scc1 {lp}")
        R = M if ps == 0 else Lr
        A(f"v_mov_b32 v{T}, v{R}")
        A("s_nop 1")
        A(f"v_permlane32_swap_b32 v{T}, v{R}")
        A("s_nop 1")
        if ps == 0:
            A(f"v_max_f32 v{M}, v{M}, v{T}")
        else:
            A(f"v_add_f32 v{Lr}, v{Lr}, v{T}")
    A(f"v_rcp_f32 v{Lr}, v{Lr}")
    A("s_nop 15")
    for i in range(16):
        A(f"v_mul_f32 v{Oo+i}, v{Oo+i}, v{Lr}")
    for i in range(8):
        A(f"v_cvt_pk_bf16_f32 v{OUT+i}, v{Oo+2*i}, v{Oo+2*i+1}")

def acc(w, tt): return ACC + 4 * (w * 4 + tt)

def transition_kv(A):
    read_ctl1(A, 200)
    A("s_nop 3")
    pairs16 = []; pairs32 = []
    for T in range(2):
        for f in range(2):
            b = KL + 16 * T + 4 * f
            for j in range(2):
                A(f"v_cvt_pk_bf16_f32 v{b+j}, v{acc(2+f,2*T)+2*j}, v{acc(2+f,2*T)+2*j+1}")
                A(f"v_cvt_pk_bf16_f32 v{b+2+j}, v{acc(2+f,2*T+1)+2*j}, v{acc(2+f,2*T+1)+2*j+1}")
                pairs16.append((b + j, b + 2 + j))
    for T in range(2):
        for f in range(2):
            b = KL + 16 * T + 8 + 4 * f
            tt = 2 * T + f
            for j in range(2):
                A(f"v_cvt_pk_bf16_f32 v{b+j}, v{acc(4,tt)+2*j}, v{acc(4,tt)+2*j+1}")
                A(f"v_cvt_pk_bf16_f32 v{b+2+j}, v{acc(5,tt)+2*j}, v{acc(5,tt)+2*j+1}")
                pairs16.append((b + j, b + 2 + j)); pairs32.append((b + j, b + 2 + j))
    A("s_nop 1")
    for a, b in pairs16: A(f"v_permlane16_swap_b32 v{a}, v{b}")
    A("s_nop 1")
    for a, b in pairs32: A(f"v_permlane32_swap_b32 v{a}, v{b}")
    A("s_lshl_b32 s46, s41, 1")
    A("s_add_u32 s46, s46, s44")
    A("s_lshl_b32 s47, s40, 1")
    A("s_add_u32 s47, s47, s45")
    A("s_lshl_b32 s48, s46, 5")
    A("s_add_u32 s48, s48, s47")
    A("s_lshl_b32 s65, s48, 7")
    A(f"s_add_u32 s65, s65, {FKV_BASE}")
    A("s_lshl_b32 s64, s48, 13")
    A("s_add_u32 s49, s64, 4096")
    A("s_lshl_b32 s66, s40, 7")
    A("s_add_u32 s66, s66, s46")
    A("s_lshl_b32 s67, s66, 7")
    A(f"s_add_u32 s67, s67, {FO_BASE}")
    A("s_lshl_b32 s66, s66, 11")
    A(f"s_add_u32 s66, s66, {O_BASE}")
    A("s_mov_b32 s63, 0")
    A("v_lshlrev_b32 v3, 4, v2")
    A("s_waitcnt lgkmcnt(0)")
    take_ctl1(A, 200)
    A("s_nop 3")
    A("s_cmp_eq_u32 s62, 0")
    A("s_cbranch_scc1 L_kvst_g")
    for bits, lab in (("", None), ("sc1", "L_kvst_g")):
        if lab: A.label(lab)
        for i in range(8):
            A(f"buffer_store_dwordx4 {vr(KL+4*i,4)}, v3, s[32:35], s{64 if i < 4 else 49} offen offset:{1024*(i%4)} {bits}")
        if not lab: A("s_branch L_kvst_done")
    A.label("L_kvst_done")

def kv_flag(A, tmp):
    g = A.newlabel("Lkfg"); d = A.newlabel("Lkfd")
    A(f"v_mov_b32 v{tmp}, s60"); A(f"v_mov_b32 v{tmp+1}, s61"); A(f"v_mov_b32 v{tmp+2}, 0")
    A("s_waitcnt vmcnt(0)")
    A("s_mov_b64 exec, 1")
    A("s_cmp_eq_u32 s62, 0")
    A(f"s_cbranch_scc1 {g}")
    A(f"buffer_store_dwordx2 {vr(tmp,2)}, v{tmp+2}, s[32:35], s65 offen")
    A(f"s_branch {d}")
    A.label(g)
    A(f"buffer_store_dwordx2 {vr(tmp,2)}, v{tmp+2}, s[32:35], s65 offen sc1")
    A.label(d)
    A("s_mov_b64 exec, -1")

def phase2(A, p):
    A(f"s_mov_b32 s56, {QSCALE:#x}")
    A(f"s_mov_b32 s57, {QSCALE:#x}")
    for i in range(16):
        A(f"v_pk_mul_f32 {vr(ACC+2*i,2)}, {vr(ACC+2*i,2)}, s[56:57]")
    pairs = []
    for T in range(2):
        for f in range(2):
            b = QF + 8 * (2 * p + T) + 4 * f
            for j in range(2):
                A(f"v_cvt_pk_bf16_f32 v{b+j}, v{acc(f,2*T)+2*j}, v{acc(f,2*T)+2*j+1}")
                A(f"v_cvt_pk_bf16_f32 v{b+2+j}, v{acc(f,2*T+1)+2*j}, v{acc(f,2*T+1)+2*j+1}")
                pairs.append((b + j, b + 2 + j))
    A("s_nop 1")
    for a, b in pairs: A(f"v_permlane16_swap_b32 v{a}, v{b}")
    A("s_lshl_b32 s58, s44, 13")
    A("v_add_u32 v0, s58, v3")
    for k in range(4):
        A(f"ds_write_b128 v0, {vr(QF+16*p+4*k,4)} offset:{p*4096 + k*1024}")
    A("v_lshrrev_b32 v1, 4, v2")
    A("v_xor_b32 v1, v1, v2")
    A("v_and_b32 v1, 1, v1")
    A("v_add_u32 v1, -1, v1")
    A("v_and_b32 v1, 0x3f803f80, v1")
    for i in range(4): A(f"v_mov_b32 v{ONES[0]+i}, v1")
    A("s_cmp_ge_u32 s40, 1")
    A("s_cselect_b32 s56, -1, 0")
    A("s_cmp_ge_u32 s40, 2")
    A("s_cselect_b32 s57, -1, 0")
    for i in range(4): A(f"v_and_b32 v{ONES[1]+i}, s56, v1")
    for i in range(4): A(f"v_and_b32 v{ONES[2]+i}, s57, v1")
    A("s_waitcnt lgkmcnt(0)")
    A("s_barrier")
    for k in range(4):
        A(f"ds_read_b128 {vr(QF+16*(1-p)+4*k,4)}, v0 offset:{(1-p)*4096 + k*1024}")
    stamp(A, 2)
    T = Tiles(A, set())
    K0, K1 = KL, KL + 16
    o0 = ONES[0]
    if p == 0:
        local = [(K0, 0, True, o0), (K0, 1, False, o0), (K1, 1, True, o0), (K0, 2, False, o0), (K1, 2, False, o0), (K0, 3, False, o0), (K1, 3, False, o0)]
        waits = {3: "s_waitcnt lgkmcnt(0)"}
    else:
        local = [(K0, 2, True, o0), (K0, 3, False, o0), (K1, 3, True, o0)]
        waits = {}
    def h_flag():
        kv_flag(A, R1)
    def h_b18():
        A("s_waitcnt lgkmcnt(0)")
        A("s_barrier")
    T.run(local, hooks={1: h_b18, 2: h_flag}, waits=waits)
    stamp(A, 3)
    tb_make(A)
    A(f"v_mov_b32 v{R1+2}, 0")
    A("s_cmp_ge_u32 s40, 1")
    A("s_cselect_b32 s52, 256, 0")
    A("s_cmp_ge_u32 s40, 2")
    A("s_cselect_b32 s53, 512, 0")
    A("s_sub_u32 s52, s65, s52")
    A("s_sub_u32 s53, s65, s53")
    A("s_mov_b32 s54, 0")
    lp = A.newlabel("Lpk"); go = A.newlabel("Lpkg")
    A.label(lp)
    A(f"buffer_load_dwordx2 {vr(R1+4,2)}, v{R1+2}, s[32:35], s52 offen sc1")
    A(f"buffer_load_dwordx2 {vr(R1+6,2)}, v{R1+2}, s[32:35], s53 offen sc1")
    A("s_add_u32 s54, s54, 1")
    A(f"s_cmp_gt_u32 s54, {POLL_MAX}")
    A(f"s_cbranch_scc1 {go}")
    A("s_waitcnt vmcnt(0)")
    A(f"v_cmp_eq_u64 vcc, s[60:61], {vr(R1+4,2)}")
    A(f"v_cmp_eq_u64 s[56:57], s[60:61], {vr(R1+6,2)}")
    A("s_and_b64 vcc, vcc, s[56:57]")
    A(f"s_cbranch_vccz {lp}")
    A.label(go)
    A("s_waitcnt vmcnt(0)")
    stamp(A, 4)
    A("s_cmp_ge_u32 s40, 1")
    A("s_cselect_b32 s52, 0, 0x40000000")
    A("s_cmp_ge_u32 s40, 2")
    A("s_cselect_b32 s53, 0, 0x40000000")
    A("s_add_u32 s52, s52, s64"); A("s_sub_u32 s52, s52, 0x4000")
    A("s_add_u32 s53, s53, s64"); A("s_sub_u32 s53, s53, 0x8000")
    for base, sb in ((R1, "s52"), (R2, "s53")):
        for half in range(2):
            for i in range(4):
                A(f"buffer_load_dwordx4 {vr(base+16*half+4*i,4)}, v3, s[32:35], {sb} offen offset:{1024*i} sc1")
            if half == 0: A(f"s_add_u32 {sb}, {sb}, 4096")
    bias_make(A, True)
    a0, a1, b0, b1 = R1, R1 + 16, R2, R2 + 16
    o1, o2 = ONES[1], ONES[2]
    if p == 0:
        part1 = [(a0, 0, False, o1), (a0, 1, False, o1), (a1, 0, False, o1), (a1, 1, False, o1), (b0, 0, True, o2), (b1, 0, False, o2), (b1, 1, True, o2)]
        w1 = {0: "s_waitcnt vmcnt(12)", 2: "s_waitcnt vmcnt(8)", 4: "s_waitcnt vmcnt(4)", 5: "s_waitcnt vmcnt(0)"}
        part2 = [(a0, 2, False, o1), (a1, 2, False, o1), (a0, 3, False, o1), (a1, 3, False, o1)]
    else:
        part1 = [(a0, 0, False, o1), (a0, 1, False, o1), (a1, 0, False, o1), (a1, 1, False, o1), (b0, 0, False, o2), (b0, 1, False, o2), (b1, 0, False, o2), (b1, 1, False, o2)]
        w1 = {0: "s_waitcnt vmcnt(12)", 2: "s_waitcnt vmcnt(8)", 4: "s_waitcnt vmcnt(4)", 6: "s_waitcnt vmcnt(0)"}
        part2 = [(a0, 2, False, o1), (a1, 2, False, o1), (b0, 2, True, o2), (b1, 2, False, o2), (a0, 3, False, o1), (a1, 3, False, o1), (b1, 3, True, o2)]
    T.run(part1, waits=w1)
    stamp(A, 5)
    merge(A, p, 1)
    def h_of1():
        o_flag(A, p, 1, OA)
    T.run(part2, hooks={2: h_of1})
    stamp(A, 6)
    merge(A, p, 2)
    o_flag(A, 2 + p, 2, OA)
    for rnd in (1, 2):
        qf = 2 * (rnd - 1) + p
        skip = A.newlabel("Lnf")
        A(f"s_bitcmp1_b32 s63, {rnd-1}")
        A(f"s_cbranch_scc0 {skip}")
        A("s_lshl_b32 s68, s40, 2")
        A(f"s_add_u32 s68, s68, {qf}")
        A("s_lshl_b32 s69, s46, 18")
        attn_slow(A, QF + 8 * qf, "s68", "s69", 24)
        o_store(A, 24, qf)
        o_flag(A, qf, 0, 16)
        A.label(skip)
    stamp(A, 7)

def phase3(A):
    D = 16; WF = [48, 64]; OF = 96
    A("s_and_b32 s46, s42, 3")
    A("s_lshr_b32 s47, s42, 2")
    A("s_lshl_b32 s48, s41, 2")
    A("s_add_u32 s48, s48, s46")
    A("s_lshl_b32 s49, s48, 5")
    A("s_lshl_b32 s50, s47, 4")
    A("s_add_u32 s49, s49, s50")
    A("s_lshl_b32 s50, s49, 7")
    A(f"s_add_u32 s50, s50, {FO_BASE}")
    A("s_lshl_b32 s49, s49, 11")
    A(f"s_add_u32 s49, s49, {O_BASE}")
    A("v_lshlrev_b32 v3, 4, v2")
    A("v_and_b32 v4, 15, v2")
    A("v_lshlrev_b32 v4, 7, v4")
    A("v_lshrrev_b32 v5, 4, v2")
    A("v_bfe_u32 v6, v2, 2, 2")
    A("v_lshrrev_b32 v7, 1, v5")
    A("v_lshlrev_b32 v7, 4, v7")
    A("v_and_b32 v8, 1, v5")
    A("v_lshl_add_u32 v7, v8, 2, v7")
    A("v_add_u32 v7, v7, v6")
    A("v_bfe_u32 v8, v7, 1, 2")
    A("v_lshlrev_b32 v7, 7, v7")
    A("v_lshl_add_u32 v7, v8, 5, v7")
    A("v_and_b32 v6, 3, v2")
    A("v_lshl_add_u32 v7, v6, 3, v7")
    A("s_lshl_b32 s51, s47, 16")
    A(f"s_add_u32 s51, s51, {WO_LDS}")
    A("v_add_u32 v10, s51, v7")
    for ct in range(1, 4):
        A(f"v_xor_b32 v{10+ct}, {32*ct}, v10")
    A("s_waitcnt vmcnt(0)")
    A("s_barrier")
    def wreads(s, st):
        f = WF[st]
        r = []
        for ct in range(4):
            r.append(f"ds_read_b64_tr_b16 {vr(f+4*ct,2)}, v{10+ct} offset:{s*4096}")
            r.append(f"ds_read_b64_tr_b16 {vr(f+4*ct+2,2)}, v{10+ct} offset:{s*4096+1024}")
        return r
    for r in wreads(0, 0): A(r)
    A("s_mov_b32 s54, 0")
    A.label("L_po")
    A(f"buffer_load_dwordx2 v[6:7], v4, s[32:35], s50 offen sc1")
    A("s_add_u32 s54, s54, 1")
    A(f"s_cmp_gt_u32 s54, {POLL_MAX}")
    A("s_cbranch_scc1 L_pog")
    A("s_waitcnt vmcnt(0)")
    A("v_cmp_ne_u64 vcc, s[60:61], v[6:7]")
    A("s_cbranch_vccnz L_po")
    A.label("L_pog")
    A("s_waitcnt vmcnt(0)")
    stamp(A, 8)
    if O.stamps: A("s_waitcnt lgkmcnt(0)")
    for k in range(32):
        A(f"buffer_load_dwordx4 {vr(OF+4*k,4)}, v3, s[32:35], s49 offen offset:{(k%4)*1024} sc1")
        if k % 4 == 3: A("s_add_u32 s49, s49, 4096")
    for s in range(16):
        st = s % 2
        R = wreads(s + 1, 1 - st) if s < 15 else []
        issued = 0
        for i in range(8):
            ct, hf = i // 2, i % 2
            w = []
            if i < 2: w.append(f"vmcnt({31 - (2*s+hf)})")
            if hf == 0: w.append(f"lgkmcnt({6 - 2*ct + issued})")
            if w: A("s_waitcnt " + " ".join(w))
            mfma16(A, D + 4 * (hf * 4 + ct), WF[st] + 4 * ct, OF + 4 * (2 * s + hf), "0" if s == 0 else None)
            if R: A(R[i]); issued += 1
    stamp(A, 9)
    A("s_nop 7")
    A("s_lshl_b32 s50, s46, 13")
    A("v_add_u32 v4, s50, v3")
    A("s_cmp_eq_u32 s47, 0")
    A("s_cbranch_scc1 L_out_lo")
    for i in range(8):
        A(f"ds_write_b128 v4, {vr(D+4*i,4)} offset:{1024*i}")
    A("s_waitcnt lgkmcnt(0)")
    A("s_barrier")
    A("s_branch L_fin")
    A.label("L_out_lo")
    A("v_and_b32 v5, 15, v2")
    A("s_lshl_b32 s50, s48, 5")
    A("v_add_u32 v5, s50, v5")
    A("v_lshlrev_b32 v5, 11, v5")
    A("v_bfe_u32 v6, v2, 4, 1")
    A("v_lshl_add_u32 v5, v6, 5, v5")
    A("v_lshrrev_b32 v6, 5, v2")
    A("v_lshl_add_u32 v5, v6, 4, v5")
    A("s_lshl_b32 s50, s40, 7")
    A("v_add_u32 v5, s50, v5")
    A("s_mov_b32 s51, 0x8000")
    A("s_barrier")
    for i in range(8):
        A(f"ds_read_b128 {vr(OF+4*i,4)}, v4 offset:{1024*i}")
    A("s_waitcnt lgkmcnt(0)")
    for i in range(32):
        A(f"v_add_f32 v{D+i}, v{D+i}, v{OF+i}")
    P = 64
    for hf in range(2):
        for cp in range(2):
            b = P + 8 * hf + 4 * cp
            for j in range(2):
                a0 = D + 4 * (hf * 4 + 2 * cp) + 2 * j; a1 = D + 4 * (hf * 4 + 2 * cp + 1) + 2 * j
                A(f"v_cvt_pk_bf16_f32 v{b+j}, v{a0}, v{a0+1}")
                A(f"v_cvt_pk_bf16_f32 v{b+2+j}, v{a1}, v{a1+1}")
    A("s_nop 1")
    for q in range(4):
        A(f"v_permlane16_swap_b32 v{P+4*q}, v{P+4*q+2}")
        A(f"v_permlane16_swap_b32 v{P+4*q+1}, v{P+4*q+3}")
    A("s_nop 1")
    for hf in range(2):
        for cp in range(2):
            A(f"buffer_store_dwordx4 {vr(P+8*hf+4*cp,4)}, v5, s[28:31], {'s51' if hf else '0'} offen offset:{64*cp}")

def helper_mid(A, is_x):
    read_ctl1(A, 24)
    A("s_waitcnt lgkmcnt(0)")
    take_ctl1(A, 24)
    A("s_barrier")
    A("s_barrier")
    if is_x: wo_issue(A, WO_PART["E"])

def main(out):
    A = Asm()
    name = "standalone__sliding_block__prompt_kernel"
    A.raw(HEADER_COMMENT.rstrip())
    A.raw(f"; @launch grid=(256,1,1) block=(512,1,1) lds=163840")
    A.raw('.amdgcn_target "amdgcn-amd-amdhsa--gfx950"')
    A.raw(".text")
    kernel_begin(A, name)
    prologue(A)
    A("s_cmp_eq_u32 s42, 4")
    A("s_cbranch_scc1 L_xl")
    A("s_cmp_eq_u32 s42, 7")
    A("s_cbranch_scc1 L_aux")
    A("s_cmp_ge_u32 s42, 5")
    A("s_cbranch_scc1 L_wl")
    p1.compute_setup(A)
    tb_make(A)
    bias_make(A, False)
    srds(A)
    p1.compute(A)
    stamp(A, 1)
    transition_kv(A)
    A("s_cmp_eq_u32 s45, 1")
    A("s_cbranch_scc1 L_p1")
    phase2(A, 0)
    A("s_branch L_p3")
    A.label("L_p1")
    phase2(A, 1)
    A("s_branch L_p3")
    A.label("L_xl")
    xloader(A)
    helper_mid(A, True)
    A("s_branch L_p3")
    A.label("L_wl")
    wloader(A)
    helper_mid(A, False)
    A("s_branch L_p3")
    A.label("L_aux")
    aux(A)
    helper_mid(A, False)
    A.label("L_p3")
    phase3(A)
    A.label("L_fin")
    if O.stamps:
        A("s_waitcnt vmcnt(0)")
        stamp(A, 10)
        A("s_waitcnt lgkmcnt(0)")
        A("s_lshl_b32 s46, s2, 3")
        A("s_add_u32 s46, s46, s42")
        A("s_lshl_b32 s46, s46, 6")
        A(f"s_add_u32 s46, s46, {ST_BASE}")
        A("v_mov_b32 v3, 0")
        A("s_mov_b64 exec, 1")
        for i in range(11):
            A(f"v_mov_b32 v4, s{80+2*i}")
            A(f"buffer_store_dword v4, v3, s[32:35], s46 offen offset:{4*i}")
        A("v_mov_b32 v4, s62")
        A(f"buffer_store_dword v4, v3, s[32:35], s46 offen offset:44")
    A.label("L_end")
    A("s_endpgm")
    A.label("L_code_end")
    A.raw('.section .rodata,"a"')
    kernel_desc(A, name, 256, 102, 256)
    open(out, "w").write(A.text())

if __name__ == "__main__":
    for a in sys.argv[2:]:
        k, v = a.split("=")
        setattr(O, k, eval(v))
    main(sys.argv[1])
```

```python
import sys, struct
from asmlib import *
import p1
from p1 import SLOT, ACC, mfma16

def f32(x): return struct.unpack("<I", struct.pack("<f", x))[0]

KV_BASE = 0
O_BASE = 8 << 20
FKV_BASE = 12 << 20
FO_BASE = 13 << 20
XT_BASE = 14 << 20
ST_BASE = 16 << 20
WS_BYTES = 268435456
QSCALE = 0x3e8293ee
NEGBIG = 0xf149f2ca
BIGB = 1e30
WO_LDS = 32768
CTL1 = 162816
M_O = 0
M_L = 16384
CTL2 = 17408
POLL_MAX = 400000

class Opt:
    stamps = False
    touch = {-1: 1, 1: 1, 5: 1, 9: 1}
    force_slow = False
    force_global = False
    codepf = False
    slow_if_global = False
O = Opt()

def mfma32(A, d, a, b, c=None):
    cs = vr(d, 16) if c is None else (c if isinstance(c, str) else vr(c, 16))
    A(f"v_mfma_f32_32x32x16_bf16 {vr(d,16)}, {vr(a,4)}, {vr(b,4)}, {cs}")

nstamp = [0]
def stamp(A, idx):
    if O.stamps:
        A(f"s_memrealtime s[{80+2*idx}:{81+2*idx}]")

def prologue(A):
    A("s_cmp_ge_u32 s2, 256")
    A("s_cbranch_scc1 L_end")
    A("s_load_dwordx8 s[4:11], s[0:1], 0")
    A("s_load_dwordx4 s[12:15], s[0:1], 32")
    stamp(A, 0)
    A("s_and_b32 s43, s2, 7")
    A("s_lshr_b32 s44, s2, 3")
    A("s_and_b32 s40, s44, 15")
    A("s_lshr_b32 s44, s44, 4")
    A("s_lshl_b32 s41, s43, 1")
    A("s_add_u32 s41, s41, s44")
    A("v_lshrrev_b32 v1, 6, v0")
    A("v_and_b32 v2, 63, v0")
    A("v_readfirstlane_b32 s42, v1")

def srds(A):
    A("s_waitcnt lgkmcnt(0)")
    for base, ptr, n in ((16, 4, 0x400000), (20, 6, 0x600000), (24, 8, 0x200000), (28, 10, 0x400000), (32, 14, WS_BYTES), (36, 12, 256)):
        A(f"s_mov_b32 s{base}, s{ptr}")
        A(f"s_mov_b32 s{base+1}, s{ptr+1}")
        A(f"s_mov_b32 s{base+2}, {n:#x}")
        A(f"s_mov_b32 s{base+3}, 0x20000")

def wo_voff(A, dst):
    A("v_lshrrev_b32 v3, 3, v2")
    A("v_and_b32 v4, 7, v2")
    A("v_and_b32 v5, 6, v3")
    A("v_xor_b32 v4, v4, v5")
    A("v_lshlrev_b32 v3, 11, v3")
    A("v_lshl_add_u32 v3, v4, 4, v3")
    A("s_lshl_b32 s44, s40, 7")
    A(f"v_add_u32 v{dst}, s44, v3")

def wo_issue(A, pieces, add_sgpr=None):
    for pc in pieces:
        if add_sgpr:
            A(f"s_add_u32 m0, s51, {WO_LDS + pc*1024}")
            A(f"s_add_u32 s48, s52, {pc*16384}")
        else:
            A(f"s_mov_b32 m0, {WO_LDS + pc*1024}")
            A(f"s_mov_b32 s48, {pc*16384}")
        A(f"buffer_load_dwordx4 v12, s[24:27], s48 offen lds")

WO_PART = {"A": list(range(88, 127)), "B": list(range(8, 48)), "C": list(range(48, 88)), "D": list(range(0, 8)), "E": [127]}

def touch_setup(A):
    A("s_lshl_b32 s55, s2, 3")
    A("v_and_b32 v5, 7, v2")
    A("v_add_u32 v5, s55, v5")
    A("v_lshlrev_b32 v5, 11, v5")
    A("v_lshrrev_b32 v6, 3, v2")
    A("v_lshl_add_u32 v20, v6, 7, v5")
    A("s_lshr_b32 s52, s2, 3")
    A("s_and_b32 s53, s2, 7")
    A("v_lshrrev_b32 v5, 4, v2")
    A("v_lshlrev_b32 v5, 6, v5")
    A("v_bfe_u32 v6, v2, 3, 1")
    A("v_add_u32 v5, v5, v6")
    A("s_lshl_b32 s55, s52, 1")
    A("v_add_u32 v5, s55, v5")
    A("v_mul_u32_u24 v5, 0x1800, v5")
    A("v_bfe_u32 v6, v2, 1, 2")
    A("v_lshl_add_u32 v5, v6, 11, v5")
    A("v_and_b32 v7, 1, v2")
    A("v_lshl_add_u32 v5, v7, 7, v5")
    A("s_lshl_b32 s55, s53, 8")
    A("v_add_u32 v21, s55, v5")
    A("v_mov_b32 v7, 0x7fffffff")
    A("v_cmp_eq_u32 vcc, 3, v6")
    A("s_nop 1")
    A("v_cndmask_b32 v21, v21, v7, vcc")
    A("v_cmp_le_u32 vcc, 32, v2")
    A("s_nop 1")
    A("v_cndmask_b32 v20, v20, v7, vcc")
    A("v_lshlrev_b32 v22, 7, v2")

def xloader(A):
    A("v_lshrrev_b32 v3, 3, v2")
    A("v_and_b32 v4, 7, v2")
    A("v_lshrrev_b32 v5, 1, v3")
    A("v_xor_b32 v6, v5, v4")
    A("v_xor_b32 v7, 4, v6")
    A("s_lshl_b32 s44, s40, 7")
    A("v_add_u32 v5, s44, v3")
    A("v_lshlrev_b32 v5, 11, v5")
    A("v_lshl_add_u32 v10, v6, 4, v5")
    A("v_lshl_add_u32 v11, v7, 4, v5")
    srds(A)
    def issue(c, slot):
        for p in range(16):
            if isinstance(slot, int):
                A(f"s_mov_b32 m0, {slot + p*1024}")
                A(f"s_mov_b32 s48, {c*128 + p*16384}")
            else:
                A(f"s_add_u32 m0, {slot}, {p*1024}")
                A(f"s_add_u32 s48, s47, {p*16384}")
            A(f"buffer_load_dwordx4 v{10+p%2}, s[16:19], s48 offen lds")
    issue(0, 0); issue(1, SLOT)
    wo_voff(A, 12)
    A("s_waitcnt vmcnt(16)")
    A("s_barrier")
    issue(2, 2 * SLOT)
    A("s_mov_b32 s49, 0")
    A("s_mov_b32 s47, 384")
    A("s_mov_b32 s50, 13")
    A.label("L_xl_loop")
    A("s_waitcnt vmcnt(16)")
    A("s_barrier")
    issue(None, "s49")
    A("s_add_u32 s47, s47, 128")
    A(f"s_add_u32 s49, s49, {SLOT}")
    A(f"s_cmp_ge_u32 s49, {3*SLOT}")
    A("s_cselect_b32 s49, 0, s49")
    A("s_sub_u32 s50, s50, 1")
    A("s_cmp_lg_u32 s50, 0")
    A("s_cbranch_scc1 L_xl_loop")
    wo_issue(A, WO_PART["A"][:15])
    A("s_waitcnt vmcnt(31)")
    A("s_barrier")
    wo_issue(A, WO_PART["B"][:16])
    A("s_waitcnt vmcnt(31)")
    A("s_barrier")
    wo_issue(A, WO_PART["C"][:16])
    A("s_barrier")
    wo_issue(A, WO_PART["D"])

def wloader(A):
    A("v_lshrrev_b32 v3, 3, v2")
    A("v_and_b32 v4, 7, v2")
    A("v_and_b32 v5, 2, v3")
    A("v_xor_b32 v6, v5, v4")
    A("v_xor_b32 v7, 4, v6")
    A("s_sub_u32 s43, s42, 5")
    A("s_lshl_b32 s44, s43, 5")
    A("v_add_u32 v5, s44, v3")
    A("v_mul_u32_u24 v5, 0x1800, v5")
    A("s_lshl_b32 s44, s41, 7")
    A("v_add_u32 v5, s44, v5")
    A("v_lshl_add_u32 v10, v6, 4, v5")
    A("v_lshl_add_u32 v11, v7, 4, v5")
    A("s_lshl_b32 s46, s43, 12")
    A("s_add_u32 s46, s46, 0x4000")
    srds(A)
    def issue(c, slot):
        for part in range(3):
            for kg in range(4):
                if isinstance(slot, int):
                    A(f"s_add_u32 m0, s46, {slot + part*8192 + kg*1024}")
                    A(f"s_mov_b32 s48, {c*0x60000 + kg*8*6144 + part*2048}")
                else:
                    A(f"s_add_u32 m0, {slot}, {part*8192 + kg*1024}")
                    A(f"s_add_u32 s48, s47, {kg*8*6144 + part*2048}")
                A(f"buffer_load_dwordx4 v{10+kg%2}, s[20:23], s48 offen lds")
    issue(0, 0); issue(1, SLOT)
    wo_voff(A, 12)
    A("s_mul_i32 s51, s43, 12288")
    A("s_mul_i32 s52, s43, 196608")
    A("s_waitcnt vmcnt(12)")
    A("s_barrier")
    issue(2, 2 * SLOT)
    A("s_mov_b32 s49, s46")
    A(f"s_mov_b32 s47, {3*0x60000}")
    A("s_mov_b32 s50, 13")
    A.label("L_wl_loop")
    A("s_waitcnt vmcnt(12)")
    A("s_barrier")
    issue(None, "s49")
    A("s_add_u32 s47, s47, 0x60000")
    A(f"s_add_u32 s49, s49, {SLOT}")
    A(f"s_cmp_ge_u32 s49, {3*SLOT}")
    A("s_cselect_b32 s49, s46, s49")
    A("s_sub_u32 s50, s50, 1")
    A("s_cmp_lg_u32 s50, 0")
    A("s_cbranch_scc1 L_wl_loop")
    wo_issue(A, WO_PART["A"][15:27], True)
    A("s_waitcnt vmcnt(24)")
    A("s_barrier")
    wo_issue(A, WO_PART["B"][16:28], True)
    A("s_waitcnt vmcnt(24)")
    A("s_barrier")
    wo_issue(A, WO_PART["C"][16:28], True)
    A("s_barrier")

def code_prefetch(A):
    A("s_getpc_b64 s[70:71]")
    A.label("L_pc")
    A("s_sub_u32 s70, s70, L_pc-standalone__sliding_block__prompt_kernel")
    A("s_subb_u32 s71, s71, 0")
    A("v_lshlrev_b32 v22, 7, v2")
    A("v_mov_b32 v23, L_code_end-standalone__sliding_block__prompt_kernel-4")
    for i in range(5):
        A(f"v_add_u32 v{32+i}, {8192*i}, v22")
        A(f"v_min_u32 v{32+i}, v{32+i}, v23")
        A(f"global_load_dword v{40+i}, v{32+i}, s[70:71]")

def aux(A):
    if O.codepf: code_prefetch(A)
    touch_setup(A)
    A("s_memrealtime s[60:61]")
    A("s_getreg_b32 s63, hwreg(HW_REG_XCC_ID)")
    srds(A)
    A("s_and_b32 s63, s63, 7")
    A("s_andn2_b32 s60, s60, 15")
    A("s_or_b32 s60, s60, 8")
    A("v_mov_b32 v24, s60"); A("v_mov_b32 v25, s61"); A("v_mov_b32 v26, 0"); A("v_mov_b32 v27, 0")
    A("v_mov_b32 v8, 0")
    st = {"c": 2}
    def touch():
        c = st["c"]; st["c"] += 4
        if c > 15: return
        c = min(c, 12)
        A(f"s_mov_b32 s57, {c*128}")
        A(f"s_mov_b32 s58, {c*0x60000}")
        A("buffer_load_dword v30, v21, s[20:23], s58 offen")
        A("buffer_load_dword v31, v20, s[16:19], s57 offen")
    A("s_sleep 4")
    for i in range(O.touch.get(-1, 0)): touch()
    A("s_mov_b64 exec, 1")
    A("buffer_atomic_cmpswap_x2 v[24:27], v8, s[36:39], 0 offen sc0 sc1")
    A("s_mov_b64 exec, -1")
    for c in range(17):
        if c == 16:
            A("s_waitcnt lgkmcnt(0)")
        A("s_barrier")
        if O.touch.get(c, 0):
            A("s_sleep 6")
            for i in range(O.touch[c]): touch()
        if c == 4:
            A("s_waitcnt vmcnt(0)")
            A("v_readfirstlane_b32 s56, v24")
            A("v_readfirstlane_b32 s57, v25")
            A("s_cmp_eq_u32 s56, 0")
            A("s_cselect_b32 s60, s60, s56")
            A("s_cselect_b32 s61, s61, s57")
            A("s_or_b32 s56, s60, s63")
            A("v_mov_b32 v24, s56"); A("v_mov_b32 v25, s61")
            A("s_lshl_b32 s57, s41, 4")
            A("s_add_u32 s57, s57, s40")
            A("s_lshl_b32 s57, s57, 7")
            A(f"s_add_u32 s59, s57, {XT_BASE}")
            A("s_mov_b64 exec, 1")
            A("buffer_store_dwordx2 v[24:25], v8, s[32:35], s59 offen sc1")
            A("s_mov_b64 exec, -1")
        if c == 9:
            A("s_lshl_b32 s57, s2, 13")
            A("buffer_load_dword v30, v22, s[24:27], s57 offen")
            A("s_lshl_b32 s57, s41, 6")
            A("s_lshl_b32 s58, s40, 1")
            A("s_add_u32 s57, s57, s58")
            A("s_lshl_b32 s58, s57, 13")
            for k in range(4):
                off = (k // 2) * 32 * 8192 + (k % 2) * 8192
                A(f"s_add_u32 s54, s58, {KV_BASE + off}")
                A("buffer_load_dword v30, v22, s[32:35], s54 offen")
            A("v_and_b32 v5, 1, v2")
            A("v_bfe_u32 v6, v2, 1, 1")
            A("v_lshl_add_u32 v5, v6, 5, v5")
            A("v_lshlrev_b32 v5, 7, v5")
            A("s_lshl_b32 s58, s57, 7")
            A(f"s_add_u32 s58, s58, {FKV_BASE}")
            A("buffer_load_dword v30, v5, s[32:35], s58 offen")
            A("buffer_load_dwordx2 v[26:27], v8, s[32:35], s59 offen offset:128 sc1")
            A("buffer_load_dwordx2 v[28:29], v8, s[32:35], s59 offen offset:256 sc1")
        if c == 13:
            A("s_waitcnt vmcnt(0)")
            A("v_cmp_eq_u64 vcc, v[24:25], v[26:27]")
            A("v_cmp_eq_u64 s[54:55], v[24:25], v[28:29]")
            A("s_cmp_ge_u32 s40, 15")
            A("s_cselect_b32 s56, 1, vcc_lo")
            A("s_cmp_ge_u32 s40, 14")
            A("s_cselect_b32 s57, 1, s54")
            A("s_and_b32 s56, s56, s57")
            A("s_and_b32 s56, s56, 1")
            if O.force_global:
                A("s_mov_b32 s56, 0")
            A("v_mov_b32 v24, s60"); A("v_mov_b32 v25, s61"); A("v_mov_b32 v26, s56"); A("v_mov_b32 v27, 0")
            A(f"v_mov_b32 v5, {CTL1}")
            A("ds_write_b128 v5, v[24:27]")
    A("v_mov_b32 v24, 0")
    A("v_lshlrev_b32 v5, 2, v2")
    A(f"ds_write_b32 v5, v24 offset:{CTL2}")

def read_ctl1(A, t):
    A(f"v_mov_b32 v1, {CTL1}")
    A(f"ds_read_b128 {vr(t,4)}, v1")

def take_ctl1(A, t):
    A(f"v_readfirstlane_b32 s60, v{t}")
    A(f"v_readfirstlane_b32 s61, v{t+1}")
    A(f"v_readfirstlane_b32 s62, v{t+2}")

ONES = [4, 8, 12]
OA = 16; LA = 80; PB = [96, 104]; KL = 112; QF = 144; SB = [176, 192]; R1 = 208; R2 = 112; BIAS = 240

def bias_make(A, upper):
    for r in range(16):
        ko = 8 * (r // 4) + r % 4
        c = (0.5 - ko) * BIGB
        if not upper:
            A(f"v_add_f32 v{BIAS+r}, {f32(c):#x}, v1")
        else:
            A(f"v_sub_f32 v{BIAS+r}, {f32(-c):#x}, v1")
    for r in range(16):
        A(f"v_min_f32 v{BIAS+r}, 0, v{BIAS+r}")

def tb_make(A):
    A("v_and_b32 v1, 31, v2")
    A("v_lshrrev_b32 v0, 5, v2")
    A("v_lshlrev_b32 v0, 2, v0")
    A("v_sub_u32 v1, v1, v0")
    A("v_cvt_f32_i32 v1, v1")
    A(f"v_mul_f32 v1, {f32(BIGB):#x}, v1")

class Tiles:
    def __init__(self, A, inited):
        self.A = A
        self.inited = inited
        self.n = 0
    def qk(self, t, tile, m):
        kv, qb, bias, ones = tile
        S = SB[t % 2]
        if m == 0:
            mfma32(self.A, S, kv, QF + 8 * qb, BIAS if bias else "0")
        else:
            mfma32(self.A, S, kv + 4, QF + 8 * qb + 4)
    def pv(self, t, tile, f):
        kv, qb, bias, ones = tile
        first = (f == 0 and qb not in self.inited)
        mfma32(self.A, OA + 16 * qb, kv + 8 + 4 * f, PB[t % 2] + 4 * f, "0" if first else None)
    def ls(self, t, tile, f):
        kv, qb, bias, ones = tile
        first = (f == 0 and qb not in self.inited)
        mfma16(self.A, LA + 4 * qb, ones, PB[t % 2] + 4 * f, "0" if first else None)
        if first: self.inited.add(qb)
    def run(self, tiles, hooks=None, waits=None):
        A = self.A
        hooks = hooks or {}; waits = waits or {}
        base = self.n
        if 0 in waits: A(waits[0])
        self.qk(base, tiles[0], 0); self.qk(base, tiles[0], 1)
        A("s_nop 11")
        for i, tile in enumerate(tiles):
            t = base + i
            S = SB[t % 2]; P = PB[t % 2]
            prev = tiles[i - 1] if i > 0 else None
            nxt = tiles[i + 1] if i + 1 < len(tiles) else None
            if i in hooks: hooks[i]()
            e = lambda r: A(f"v_exp_f32 v{S+r}, v{S+r}")
            c = lambda k: A(f"v_cvt_pk_bf16_f32 v{P+k}, v{S+2*k}, v{S+2*k+1}")
            e(0); e(1)
            if prev: self.pv(t - 1, prev, 1)
            for r in range(2, 6): e(r)
            if prev: self.ls(t - 1, prev, 1)
            e(6); e(7)
            if nxt:
                if (i + 1) in waits: A(waits[i + 1])
                self.qk(t + 1, nxt, 0)
            for k in range(4): c(k)
            e(8)
            if nxt: self.qk(t + 1, nxt, 1)
            for r in range(9, 13): e(r)
            self.pv(t, tile, 0)
            for r in range(13, 16): e(r)
            c(4)
            self.ls(t, tile, 0)
            for k in range(5, 8): c(k)
        A("s_nop 1")
        t = base + len(tiles) - 1
        self.pv(t, tiles[-1], 1)
        self.ls(t, tiles[-1], 1)
        self.n = base + len(tiles)

def lds_wait(A, off, val, tmp):
    lp = A.newlabel("Lw")
    A.label(lp)
    A(f"ds_read_b32 v{tmp}, v0 offset:{off}")
    A("s_waitcnt lgkmcnt(0)")
    A(f"v_readfirstlane_b32 s58, v{tmp}")
    A(f"s_cmp_lt_u32 s58, {val}")
    A(f"s_cbranch_scc1 {lp}")

def merge(A, p, rnd):
    qf = 2 * (rnd - 1) + p; qs = 2 * (rnd - 1) + 1 - p
    T = SB[0]
    A("s_lshl_b32 s58, s44, 2")
    A("v_mov_b32 v0, s58")
    if rnd == 2:
        lds_wait(A, CTL2 + 16 + (1 - p) * 8, 1, PB[0])
    A("s_lshl_b32 s58, s44, 12")
    A(f"v_add_u32 v{PB[0]}, s58, v3")
    A("s_lshl_b32 s58, s44, 8")
    A(f"v_lshlrev_b32 v{PB[0]+1}, 2, v2")
    A(f"v_add_u32 v{PB[0]+1}, s58, v{PB[0]+1}")
    A(f"v_and_b32 v{PB[0]+2}, 16, v2")
    A(f"v_cmp_ne_u32 vcc, 0, v{PB[0]+2}")
    A("s_nop 7")
    A(f"v_cndmask_b32 v{PB[0]+3}, v{LA+4*qs}, v{LA+4*qs+1}, vcc")
    A(f"v_cndmask_b32 v{PB[0]+4}, v{LA+4*qf}, v{LA+4*qf+1}, vcc")
    for i in range(4):
        A(f"ds_write_b128 v{PB[0]}, {vr(OA+16*qs+4*i,4)} offset:{M_O + p*8192 + i*1024}")
    A(f"ds_write_b32 v{PB[0]+1}, v{PB[0]+3} offset:{M_L + p*512}")
    A(f"v_mov_b32 v{PB[0]+5}, {rnd}")
    A(f"ds_write_b32 v0, v{PB[0]+5} offset:{CTL2 + p*8}")
    lds_wait(A, CTL2 + (1 - p) * 8, rnd, PB[0] + 6)
    for i in range(4):
        A(f"ds_read_b128 {vr(T+4*i,4)}, v{PB[0]} offset:{M_O + (1-p)*8192 + i*1024}")
    A(f"ds_read_b32 v{PB[0]+3}, v{PB[0]+1} offset:{M_L + (1-p)*512}")
    A("s_waitcnt lgkmcnt(0)")
    A(f"ds_write_b32 v0, v{PB[0]+5} offset:{CTL2 + 16 + p*8}")
    Lr = PB[0] + 4
    A(f"v_add_f32 v{Lr}, v{Lr}, v{PB[0]+3}")
    Ob = OA + 16 * qf
    for i in range(16):
        A(f"v_add_f32 v{Ob+i}, v{Ob+i}, v{T+i}")
    A(f"v_rcp_f32 v{PB[0]+3}, v{Lr}")
    A(f"v_add_f32 v{T}, |v{Ob}|, |v{Ob+1}|")
    A(f"v_add_f32 v{T+1}, |v{Ob+2}|, |v{Ob+3}|")
    for i in range(4, 16, 2):
        A(f"v_add_f32 v{T}, v{T}, |v{Ob+i}|")
        A(f"v_add_f32 v{T+1}, v{T+1}, |v{Ob+i+1}|")
    A(f"v_add_f32 v{T}, v{T}, v{T+1}")
    A(f"v_cmp_le_f32 vcc, {f32(2.0**-30):#x}, v{Lr}")
    A(f"s_mov_b64 s[56:57], vcc")
    A(f"v_cmp_ge_f32 vcc, {f32(2.0**30):#x}, v{Lr}")
    A("s_and_b64 s[56:57], s[56:57], vcc")
    A(f"v_cmp_gt_f32 vcc, {f32(2.0**100):#x}, v{T}")
    A("s_and_b64 s[56:57], s[56:57], vcc")
    for i in range(16):
        A(f"v_mul_f32 v{Ob+i}, v{Ob+i}, v{PB[0]+3}")
    for i in range(8):
        A(f"v_cvt_pk_bf16_f32 v{T+16+i}, v{Ob+2*i}, v{Ob+2*i+1}")
    skip = A.newlabel("Lskip")
    A("s_cmp_eq_u64 s[56:57], -1")
    if O.force_slow:
        A("s_cmp_eq_u32 s40, 99")
    if O.slow_if_global:
        A("s_cmp_eq_u32 s62, 1")
    A(f"s_cselect_b32 s58, 0, {1 << (rnd-1)}")
    A("s_or_b32 s63, s63, s58")
    A("s_cmp_lg_u32 s58, 0")
    A(f"s_cbranch_scc1 {skip}")
    o_store(A, T + 16, qf)
    A.label(skip)

def o_addr_setup(A):
    pass

def o_store(A, src, qf):
    t = PB[0] + 6
    A(f"v_and_b32 v{t}, 15, v2")
    A(f"v_lshlrev_b32 v{t}, 4, v{t}")
    A(f"v_bfe_u32 v{t+1}, v2, 4, 1")
    A(f"v_lshl_add_u32 v{t}, v{t+1}, 10, v{t}")
    A(f"v_lshrrev_b32 v{t+1}, 5, v2")
    A(f"v_lshl_add_u32 v{t}, v{t+1}, 8, v{t}")
    A(f"s_add_u32 s58, s66, {qf*65536}")
    A(f"buffer_store_dwordx4 {vr(src,4)}, v{t}, s[32:35], s58 offen sc1")
    A(f"buffer_store_dwordx4 {vr(src+4,4)}, v{t}, s[32:35], s58 offen offset:512 sc1")

def o_flag(A, qf, bit, tmp):
    skip = A.newlabel("Lskf")
    if bit:
        A(f"s_bitcmp1_b32 s63, {bit-1}")
        A(f"s_cbranch_scc1 {skip}")
    A(f"v_mov_b32 v{tmp}, s60"); A(f"v_mov_b32 v{tmp+1}, s61"); A(f"v_mov_b32 v{tmp+2}, 0")
    A(f"s_add_u32 s58, s67, {qf*32*128}")
    A("s_waitcnt vmcnt(0)")
    A("s_mov_b64 exec, 1")
    A(f"buffer_store_dwordx2 {vr(tmp,2)}, v{tmp+2}, s[32:35], s58 offen sc1")
    A("s_mov_b64 exec, -1")
    A.label(skip)

def attn_slow(A, QFr, s_qb, s_kvb, OUT):
    KF, VF, S, PF, Oo = 32, 40, 48, 64, 80
    M, Lr, T, D = 96, 97, 98, 100
    A("v_and_b32 v4, 31, v2")
    A("v_lshrrev_b32 v5, 5, v2")
    A("v_lshlrev_b32 v5, 2, v5")
    A("v_sub_u32 v4, v4, v5")
    A(f"s_sub_u32 s52, {s_qb}, 8")
    A("s_max_i32 s52, s52, 0")
    A(f"v_mov_b32 v{M}, {NEGBIG:#x}")
    A(f"v_mov_b32 v{T+1}, {NEGBIG:#x}")
    A(f"v_mov_b32 v{Lr}, 0")
    for i in range(16):
        A(f"v_mov_b32 v{Oo+i}, 0")
    A("s_movk_i32 s57, 256")
    for ps in range(2):
        A("s_mov_b32 s53, s52")
        lp = A.newlabel("Lat")
        A.label(lp)
        A("s_lshl_b32 s54, s53, 12")
        A(f"s_add_u32 s54, s54, {s_kvb}")
        A(f"buffer_load_dwordx4 {vr(KF,4)}, v3, s[32:35], s54 offen sc1")
        A(f"buffer_load_dwordx4 {vr(KF+4,4)}, v3, s[32:35], s54 offen offset:1024 sc1")
        if ps:
            A(f"buffer_load_dwordx4 {vr(VF,4)}, v3, s[32:35], s54 offen offset:2048 sc1")
            A(f"buffer_load_dwordx4 {vr(VF+4,4)}, v3, s[32:35], s54 offen offset:3072 sc1")
        A(f"s_sub_u32 s55, {s_qb}, s53")
        A("s_lshl_b32 s55, s55, 5")
        A(f"v_add_u32 v{D}, s55, v4")
        A("s_waitcnt vmcnt(0)")
        mfma32(A, S, KF, QFr, "0")
        mfma32(A, S, KF + 4, QFr + 4)
        A("s_nop 15")
        for r in range(16):
            ko = 8 * (r // 4) + r % 4
            A(f"v_subrev_u32 v{T}, {ko}, v{D}")
            A(f"v_cmp_gt_u32 vcc, s57, v{T}")
            A("s_nop 1")
            A(f"v_cndmask_b32 v{S+r}, v{T+1}, v{S+r}, vcc")
            if ps == 0:
                A(f"v_max_f32 v{M}, v{M}, v{S+r}")
            else:
                A(f"v_sub_f32 v{S+r}, v{S+r}, v{M}")
                A(f"v_exp_f32 v{S+r}, v{S+r}")
                A("s_nop 0")
                A(f"v_add_f32 v{Lr}, v{Lr}, v{S+r}")
        if ps:
            for i in range(8):
                A(f"v_cvt_pk_bf16_f32 v{PF+i}, v{S+2*i}, v{S+2*i+1}")
            A("s_nop 1")
            mfma32(A, Oo, VF, PF)
            mfma32(A, Oo, VF + 4, PF + 4)
        A("s_add_u32 s53, s53, 1")
        A(f"s_cmp_le_u32 s53, {s_qb}")
        A(f"s_cbranch_scc1 {lp}")
        R = M if ps == 0 else Lr
        A(f"v_mov_b32 v{T}, v{R}")
        A("s_nop 1")
        A(f"v_permlane32_swap_b32 v{T}, v{R}")
        A("s_nop 1")
        if ps == 0:
            A(f"v_max_f32 v{M}, v{M}, v{T}")
        else:
            A(f"v_add_f32 v{Lr}, v{Lr}, v{T}")
    A(f"v_rcp_f32 v{Lr}, v{Lr}")
    A("s_nop 15")
    for i in range(16):
        A(f"v_mul_f32 v{Oo+i}, v{Oo+i}, v{Lr}")
    for i in range(8):
        A(f"v_cvt_pk_bf16_f32 v{OUT+i}, v{Oo+2*i}, v{Oo+2*i+1}")

def acc(w, tt): return ACC + 4 * (w * 4 + tt)

def transition_kv(A):
    read_ctl1(A, 200)
    A("s_nop 3")
    pairs16 = []; pairs32 = []
    for T in range(2):
        for f in range(2):
            b = KL + 16 * T + 4 * f
            for j in range(2):
                A(f"v_cvt_pk_bf16_f32 v{b+j}, v{acc(2+f,2*T)+2*j}, v{acc(2+f,2*T)+2*j+1}")
                A(f"v_cvt_pk_bf16_f32 v{b+2+j}, v{acc(2+f,2*T+1)+2*j}, v{acc(2+f,2*T+1)+2*j+1}")
                pairs16.append((b + j, b + 2 + j))
    for T in range(2):
        for f in range(2):
            b = KL + 16 * T + 8 + 4 * f
            tt = 2 * T + f
            for j in range(2):
                A(f"v_cvt_pk_bf16_f32 v{b+j}, v{acc(4,tt)+2*j}, v{acc(4,tt)+2*j+1}")
                A(f"v_cvt_pk_bf16_f32 v{b+2+j}, v{acc(5,tt)+2*j}, v{acc(5,tt)+2*j+1}")
                pairs16.append((b + j, b + 2 + j)); pairs32.append((b + j, b + 2 + j))
    A("s_nop 1")
    for a, b in pairs16: A(f"v_permlane16_swap_b32 v{a}, v{b}")
    A("s_nop 1")
    for a, b in pairs32: A(f"v_permlane32_swap_b32 v{a}, v{b}")
    A("s_lshl_b32 s46, s41, 1")
    A("s_add_u32 s46, s46, s44")
    A("s_lshl_b32 s47, s40, 1")
    A("s_add_u32 s47, s47, s45")
    A("s_lshl_b32 s48, s46, 5")
    A("s_add_u32 s48, s48, s47")
    A("s_lshl_b32 s65, s48, 7")
    A(f"s_add_u32 s65, s65, {FKV_BASE}")
    A("s_lshl_b32 s64, s48, 13")
    A("s_add_u32 s49, s64, 4096")
    A("s_lshl_b32 s66, s40, 7")
    A("s_add_u32 s66, s66, s46")
    A("s_lshl_b32 s67, s66, 7")
    A(f"s_add_u32 s67, s67, {FO_BASE}")
    A("s_lshl_b32 s66, s66, 11")
    A(f"s_add_u32 s66, s66, {O_BASE}")
    A("s_mov_b32 s63, 0")
    A("v_lshlrev_b32 v3, 4, v2")
    A("s_waitcnt lgkmcnt(0)")
    take_ctl1(A, 200)
    A("s_nop 3")
    A("s_cmp_eq_u32 s62, 0")
    A("s_cbranch_scc1 L_kvst_g")
    for bits, lab in (("", None), ("sc1", "L_kvst_g")):
        if lab: A.label(lab)
        for i in range(8):
            A(f"buffer_store_dwordx4 {vr(KL+4*i,4)}, v3, s[32:35], s{64 if i < 4 else 49} offen offset:{1024*(i%4)} {bits}")
        if not lab: A("s_branch L_kvst_done")
    A.label("L_kvst_done")

def kv_flag(A, tmp):
    g = A.newlabel("Lkfg"); d = A.newlabel("Lkfd")
    A(f"v_mov_b32 v{tmp}, s60"); A(f"v_mov_b32 v{tmp+1}, s61"); A(f"v_mov_b32 v{tmp+2}, 0")
    A("s_waitcnt vmcnt(0)")
    A("s_mov_b64 exec, 1")
    A("s_cmp_eq_u32 s62, 0")
    A(f"s_cbranch_scc1 {g}")
    A(f"buffer_store_dwordx2 {vr(tmp,2)}, v{tmp+2}, s[32:35], s65 offen")
    A(f"s_branch {d}")
    A.label(g)
    A(f"buffer_store_dwordx2 {vr(tmp,2)}, v{tmp+2}, s[32:35], s65 offen sc1")
    A.label(d)
    A("s_mov_b64 exec, -1")

def phase2(A, p):
    A(f"s_mov_b32 s56, {QSCALE:#x}")
    A(f"s_mov_b32 s57, {QSCALE:#x}")
    for i in range(16):
        A(f"v_pk_mul_f32 {vr(ACC+2*i,2)}, {vr(ACC+2*i,2)}, s[56:57]")
    pairs = []
    for T in range(2):
        for f in range(2):
            b = QF + 8 * (2 * p + T) + 4 * f
            for j in range(2):
                A(f"v_cvt_pk_bf16_f32 v{b+j}, v{acc(f,2*T)+2*j}, v{acc(f,2*T)+2*j+1}")
                A(f"v_cvt_pk_bf16_f32 v{b+2+j}, v{acc(f,2*T+1)+2*j}, v{acc(f,2*T+1)+2*j+1}")
                pairs.append((b + j, b + 2 + j))
    A("s_nop 1")
    for a, b in pairs: A(f"v_permlane16_swap_b32 v{a}, v{b}")
    A("s_lshl_b32 s58, s44, 13")
    A("v_add_u32 v0, s58, v3")
    for k in range(4):
        A(f"ds_write_b128 v0, {vr(QF+16*p+4*k,4)} offset:{p*4096 + k*1024}")
    A("v_lshrrev_b32 v1, 4, v2")
    A("v_xor_b32 v1, v1, v2")
    A("v_and_b32 v1, 1, v1")
    A("v_add_u32 v1, -1, v1")
    A("v_and_b32 v1, 0x3f803f80, v1")
    for i in range(4): A(f"v_mov_b32 v{ONES[0]+i}, v1")
    A("s_cmp_ge_u32 s40, 1")
    A("s_cselect_b32 s56, -1, 0")
    A("s_cmp_ge_u32 s40, 2")
    A("s_cselect_b32 s57, -1, 0")
    for i in range(4): A(f"v_and_b32 v{ONES[1]+i}, s56, v1")
    for i in range(4): A(f"v_and_b32 v{ONES[2]+i}, s57, v1")
    A("s_waitcnt lgkmcnt(0)")
    A("s_barrier")
    for k in range(4):
        A(f"ds_read_b128 {vr(QF+16*(1-p)+4*k,4)}, v0 offset:{(1-p)*4096 + k*1024}")
    stamp(A, 2)
    T = Tiles(A, set())
    K0, K1 = KL, KL + 16
    o0 = ONES[0]
    if p == 0:
        local = [(K0, 0, True, o0), (K0, 1, False, o0), (K1, 1, True, o0), (K0, 2, False, o0), (K1, 2, False, o0), (K0, 3, False, o0), (K1, 3, False, o0)]
        waits = {3: "s_waitcnt lgkmcnt(0)"}
    else:
        local = [(K0, 2, True, o0), (K0, 3, False, o0), (K1, 3, True, o0)]
        waits = {}
    def h_flag():
        kv_flag(A, R1)
    def h_b18():
        A("s_waitcnt lgkmcnt(0)")
        A("s_barrier")
    T.run(local, hooks={1: h_b18, 2: h_flag}, waits=waits)
    stamp(A, 3)
    tb_make(A)
    A(f"v_mov_b32 v{R1+2}, 0")
    A("s_cmp_ge_u32 s40, 1")
    A("s_cselect_b32 s52, 256, 0")
    A("s_cmp_ge_u32 s40, 2")
    A("s_cselect_b32 s53, 512, 0")
    A("s_sub_u32 s52, s65, s52")
    A("s_sub_u32 s53, s65, s53")
    A("s_mov_b32 s54, 0")
    lp = A.newlabel("Lpk"); go = A.newlabel("Lpkg")
    A.label(lp)
    A(f"buffer_load_dwordx2 {vr(R1+4,2)}, v{R1+2}, s[32:35], s52 offen sc1")
    A(f"buffer_load_dwordx2 {vr(R1+6,2)}, v{R1+2}, s[32:35], s53 offen sc1")
    A("s_add_u32 s54, s54, 1")
    A(f"s_cmp_gt_u32 s54, {POLL_MAX}")
    A(f"s_cbranch_scc1 {go}")
    A("s_waitcnt vmcnt(0)")
    A(f"v_cmp_eq_u64 vcc, s[60:61], {vr(R1+4,2)}")
    A(f"v_cmp_eq_u64 s[56:57], s[60:61], {vr(R1+6,2)}")
    A("s_and_b64 vcc, vcc, s[56:57]")
    A(f"s_cbranch_vccz {lp}")
    A.label(go)
    A("s_waitcnt vmcnt(0)")
    stamp(A, 4)
    A("s_cmp_ge_u32 s40, 1")
    A("s_cselect_b32 s52, 0, 0x40000000")
    A("s_cmp_ge_u32 s40, 2")
    A("s_cselect_b32 s53, 0, 0x40000000")
    A("s_add_u32 s52, s52, s64"); A("s_sub_u32 s52, s52, 0x4000")
    A("s_add_u32 s53, s53, s64"); A("s_sub_u32 s53, s53, 0x8000")
    for base, sb in ((R1, "s52"), (R2, "s53")):
        for half in range(2):
            for i in range(4):
                A(f"buffer_load_dwordx4 {vr(base+16*half+4*i,4)}, v3, s[32:35], {sb} offen offset:{1024*i} sc1")
            if half == 0: A(f"s_add_u32 {sb}, {sb}, 4096")
    bias_make(A, True)
    a0, a1, b0, b1 = R1, R1 + 16, R2, R2 + 16
    o1, o2 = ONES[1], ONES[2]
    if p == 0:
        part1 = [(a0, 0, False, o1), (a0, 1, False, o1), (a1, 0, False, o1), (a1, 1, False, o1), (b0, 0, True, o2), (b1, 0, False, o2), (b1, 1, True, o2)]
        w1 = {0: "s_waitcnt vmcnt(12)", 2: "s_waitcnt vmcnt(8)", 4: "s_waitcnt vmcnt(4)", 5: "s_waitcnt vmcnt(0)"}
        part2 = [(a0, 2, False, o1), (a1, 2, False, o1), (a0, 3, False, o1), (a1, 3, False, o1)]
    else:
        part1 = [(a0, 0, False, o1), (a0, 1, False, o1), (a1, 0, False, o1), (a1, 1, False, o1), (b0, 0, False, o2), (b0, 1, False, o2), (b1, 0, False, o2), (b1, 1, False, o2)]
        w1 = {0: "s_waitcnt vmcnt(12)", 2: "s_waitcnt vmcnt(8)", 4: "s_waitcnt vmcnt(4)", 6: "s_waitcnt vmcnt(0)"}
        part2 = [(a0, 2, False, o1), (a1, 2, False, o1), (b0, 2, True, o2), (b1, 2, False, o2), (a0, 3, False, o1), (a1, 3, False, o1), (b1, 3, True, o2)]
    T.run(part1, waits=w1)
    stamp(A, 5)
    merge(A, p, 1)
    def h_of1():
        o_flag(A, p, 1, OA)
    T.run(part2, hooks={2: h_of1})
    stamp(A, 6)
    merge(A, p, 2)
    o_flag(A, 2 + p, 2, OA)
    for rnd in (1, 2):
        qf = 2 * (rnd - 1) + p
        skip = A.newlabel("Lnf")
        A(f"s_bitcmp1_b32 s63, {rnd-1}")
        A(f"s_cbranch_scc0 {skip}")
        A("s_lshl_b32 s68, s40, 2")
        A(f"s_add_u32 s68, s68, {qf}")
        A("s_lshl_b32 s69, s46, 18")
        attn_slow(A, QF + 8 * qf, "s68", "s69", 24)
        o_store(A, 24, qf)
        o_flag(A, qf, 0, 16)
        A.label(skip)
    stamp(A, 7)

def phase3(A):
    D = 16; WF = [48, 64]; OF = 96
    A("s_and_b32 s46, s42, 3")
    A("s_lshr_b32 s47, s42, 2")
    A("s_lshl_b32 s48, s41, 2")
    A("s_add_u32 s48, s48, s46")
    A("s_lshl_b32 s49, s48, 5")
    A("s_lshl_b32 s50, s47, 4")
    A("s_add_u32 s49, s49, s50")
    A("s_lshl_b32 s50, s49, 7")
    A(f"s_add_u32 s50, s50, {FO_BASE}")
    A("s_lshl_b32 s49, s49, 11")
    A(f"s_add_u32 s49, s49, {O_BASE}")
    A("v_lshlrev_b32 v3, 4, v2")
    A("v_and_b32 v4, 15, v2")
    A("v_lshlrev_b32 v4, 7, v4")
    A("v_lshrrev_b32 v5, 4, v2")
    A("v_bfe_u32 v6, v2, 2, 2")
    A("v_lshrrev_b32 v7, 1, v5")
    A("v_lshlrev_b32 v7, 4, v7")
    A("v_and_b32 v8, 1, v5")
    A("v_lshl_add_u32 v7, v8, 2, v7")
    A("v_add_u32 v7, v7, v6")
    A("v_bfe_u32 v8, v7, 1, 2")
    A("v_lshlrev_b32 v7, 7, v7")
    A("v_lshl_add_u32 v7, v8, 5, v7")
    A("v_and_b32 v6, 3, v2")
    A("v_lshl_add_u32 v7, v6, 3, v7")
    A("s_lshl_b32 s51, s47, 16")
    A(f"s_add_u32 s51, s51, {WO_LDS}")
    A("v_add_u32 v10, s51, v7")
    for ct in range(1, 4):
        A(f"v_xor_b32 v{10+ct}, {32*ct}, v10")
    A("s_waitcnt vmcnt(0)")
    A("s_barrier")
    def wreads(s, st):
        f = WF[st]
        r = []
        for ct in range(4):
            r.append(f"ds_read_b64_tr_b16 {vr(f+4*ct,2)}, v{10+ct} offset:{s*4096}")
            r.append(f"ds_read_b64_tr_b16 {vr(f+4*ct+2,2)}, v{10+ct} offset:{s*4096+1024}")
        return r
    for r in wreads(0, 0): A(r)
    A("s_mov_b32 s54, 0")
    A.label("L_po")
    A(f"buffer_load_dwordx2 v[6:7], v4, s[32:35], s50 offen sc1")
    A("s_add_u32 s54, s54, 1")
    A(f"s_cmp_gt_u32 s54, {POLL_MAX}")
    A("s_cbranch_scc1 L_pog")
    A("s_waitcnt vmcnt(0)")
    A("v_cmp_ne_u64 vcc, s[60:61], v[6:7]")
    A("s_cbranch_vccnz L_po")
    A.label("L_pog")
    A("s_waitcnt vmcnt(0)")
    stamp(A, 8)
    if O.stamps: A("s_waitcnt lgkmcnt(0)")
    for k in range(32):
        A(f"buffer_load_dwordx4 {vr(OF+4*k,4)}, v3, s[32:35], s49 offen offset:{(k%4)*1024} sc1")
        if k % 4 == 3: A("s_add_u32 s49, s49, 4096")
    for s in range(16):
        st = s % 2
        R = wreads(s + 1, 1 - st) if s < 15 else []
        issued = 0
        for i in range(8):
            ct, hf = i // 2, i % 2
            w = []
            if i < 2: w.append(f"vmcnt({31 - (2*s+hf)})")
            if hf == 0: w.append(f"lgkmcnt({6 - 2*ct + issued})")
            if w: A("s_waitcnt " + " ".join(w))
            mfma16(A, D + 4 * (hf * 4 + ct), WF[st] + 4 * ct, OF + 4 * (2 * s + hf), "0" if s == 0 else None)
            if R: A(R[i]); issued += 1
    stamp(A, 9)
    A("s_nop 7")
    A("s_lshl_b32 s50, s46, 13")
    A("v_add_u32 v4, s50, v3")
    A("s_cmp_eq_u32 s47, 0")
    A("s_cbranch_scc1 L_out_lo")
    for i in range(8):
        A(f"ds_write_b128 v4, {vr(D+4*i,4)} offset:{1024*i}")
    A("s_waitcnt lgkmcnt(0)")
    A("s_barrier")
    A("s_branch L_fin")
    A.label("L_out_lo")
    A("v_and_b32 v5, 15, v2")
    A("s_lshl_b32 s50, s48, 5")
    A("v_add_u32 v5, s50, v5")
    A("v_lshlrev_b32 v5, 11, v5")
    A("v_bfe_u32 v6, v2, 4, 1")
    A("v_lshl_add_u32 v5, v6, 5, v5")
    A("v_lshrrev_b32 v6, 5, v2")
    A("v_lshl_add_u32 v5, v6, 4, v5")
    A("s_lshl_b32 s50, s40, 7")
    A("v_add_u32 v5, s50, v5")
    A("s_mov_b32 s51, 0x8000")
    A("s_barrier")
    for i in range(8):
        A(f"ds_read_b128 {vr(OF+4*i,4)}, v4 offset:{1024*i}")
    A("s_waitcnt lgkmcnt(0)")
    for i in range(32):
        A(f"v_add_f32 v{D+i}, v{D+i}, v{OF+i}")
    P = 64
    for hf in range(2):
        for cp in range(2):
            b = P + 8 * hf + 4 * cp
            for j in range(2):
                a0 = D + 4 * (hf * 4 + 2 * cp) + 2 * j; a1 = D + 4 * (hf * 4 + 2 * cp + 1) + 2 * j
                A(f"v_cvt_pk_bf16_f32 v{b+j}, v{a0}, v{a0+1}")
                A(f"v_cvt_pk_bf16_f32 v{b+2+j}, v{a1}, v{a1+1}")
    A("s_nop 1")
    for q in range(4):
        A(f"v_permlane16_swap_b32 v{P+4*q}, v{P+4*q+2}")
        A(f"v_permlane16_swap_b32 v{P+4*q+1}, v{P+4*q+3}")
    A("s_nop 1")
    for hf in range(2):
        for cp in range(2):
            A(f"buffer_store_dwordx4 {vr(P+8*hf+4*cp,4)}, v5, s[28:31], {'s51' if hf else '0'} offen offset:{64*cp}")

def helper_mid(A, is_x):
    read_ctl1(A, 24)
    A("s_waitcnt lgkmcnt(0)")
    take_ctl1(A, 24)
    A("s_barrier")
    A("s_barrier")
    if is_x: wo_issue(A, WO_PART["E"])

def main(out):
    A = Asm()
    name = "standalone__sliding_block__prompt_kernel"
    A.raw(HEADER_COMMENT.rstrip())
    A.raw(f"; @launch grid=(256,1,1) block=(512,1,1) lds=163840")
    A.raw('.amdgcn_target "amdgcn-amd-amdhsa--gfx950"')
    A.raw(".text")
    kernel_begin(A, name)
    prologue(A)
    A("s_cmp_eq_u32 s42, 4")
    A("s_cbranch_scc1 L_xl")
    A("s_cmp_eq_u32 s42, 7")
    A("s_cbranch_scc1 L_aux")
    A("s_cmp_ge_u32 s42, 5")
    A("s_cbranch_scc1 L_wl")
    p1.compute_setup(A)
    tb_make(A)
    bias_make(A, False)
    srds(A)
    p1.compute(A)
    stamp(A, 1)
    transition_kv(A)
    A("s_cmp_eq_u32 s45, 1")
    A("s_cbranch_scc1 L_p1")
    phase2(A, 0)
    A("s_branch L_p3")
    A.label("L_p1")
    phase2(A, 1)
    A("s_branch L_p3")
    A.label("L_xl")
    xloader(A)
    helper_mid(A, True)
    A("s_branch L_p3")
    A.label("L_wl")
    wloader(A)
    helper_mid(A, False)
    A("s_branch L_p3")
    A.label("L_aux")
    aux(A)
    helper_mid(A, False)
    A.label("L_p3")
    phase3(A)
    A.label("L_fin")
    if O.stamps:
        A("s_waitcnt vmcnt(0)")
        stamp(A, 10)
        A("s_waitcnt lgkmcnt(0)")
        A("s_lshl_b32 s46, s2, 3")
        A("s_add_u32 s46, s46, s42")
        A("s_lshl_b32 s46, s46, 6")
        A(f"s_add_u32 s46, s46, {ST_BASE}")
        A("v_mov_b32 v3, 0")
        A("s_mov_b64 exec, 1")
        for i in range(11):
            A(f"v_mov_b32 v4, s{80+2*i}")
            A(f"buffer_store_dword v4, v3, s[32:35], s46 offen offset:{4*i}")
        A("v_mov_b32 v4, s62")
        A(f"buffer_store_dword v4, v3, s[32:35], s46 offen offset:44")
    A.label("L_end")
    A("s_endpgm")
    A.label("L_code_end")
    A.raw('.section .rodata,"a"')
    kernel_desc(A, name, 256, 102, 256)
    open(out, "w").write(A.text())

if __name__ == "__main__":
    for a in sys.argv[2:]:
        k, v = a.split("=")
        setattr(O, k, eval(v))
    main(sys.argv[1])
```

```python
import sys, struct
from asmlib import *
import p1
from p1 import SLOT, ACC, mfma16

def f32(x): return struct.unpack("<I", struct.pack("<f", x))[0]

KV_BASE = 0
O_BASE = 8 << 20
FKV_BASE = 12 << 20
FO_BASE = 13 << 20
XT_BASE = 14 << 20
ST_BASE = 16 << 20
WS_BYTES = 268435456
QSCALE = 0x3e8293ee
NEGBIG = 0xf149f2ca
BIGB = 1e30
WO_LDS = 32768
CTL1 = 162816
M_O = 0
M_L = 16384
CTL2 = 17408
POLL_MAX = 400000

class Opt:
    stamps = False
    touch = {-1: 1, 1: 1, 5: 1, 9: 1}
    force_slow = False
    force_global = False
    codepf = False
    slow_if_global = False
    probe = None
O = Opt()

def mfma32(A, d, a, b, c=None):
    cs = vr(d, 16) if c is None else (c if isinstance(c, str) else vr(c, 16))
    A(f"v_mfma_f32_32x32x16_bf16 {vr(d,16)}, {vr(a,4)}, {vr(b,4)}, {cs}")

nstamp = [0]
def stamp(A, idx):
    if O.stamps or O.probe:
        A(f"s_memrealtime s[{80+2*idx}:{81+2*idx}]")

def prologue(A):
    A("s_cmp_ge_u32 s2, 256")
    A("s_cbranch_scc1 L_end")
    A("s_load_dwordx8 s[4:11], s[0:1], 0")
    A("s_load_dwordx4 s[12:15], s[0:1], 32")
    stamp(A, 0)
    A("s_and_b32 s43, s2, 7")
    A("s_lshr_b32 s44, s2, 3")
    A("s_and_b32 s40, s44, 15")
    A("s_lshr_b32 s44, s44, 4")
    A("s_lshl_b32 s41, s43, 1")
    A("s_add_u32 s41, s41, s44")
    A("v_lshrrev_b32 v1, 6, v0")
    A("v_and_b32 v2, 63, v0")
    A("v_readfirstlane_b32 s42, v1")

def srds(A):
    A("s_waitcnt lgkmcnt(0)")
    for base, ptr, n in ((16, 4, 0x400000), (20, 6, 0x600000), (24, 8, 0x200000), (28, 10, 0x400000), (32, 14, WS_BYTES), (36, 12, 256)):
        A(f"s_mov_b32 s{base}, s{ptr}")
        A(f"s_mov_b32 s{base+1}, s{ptr+1}")
        A(f"s_mov_b32 s{base+2}, {n:#x}")
        A(f"s_mov_b32 s{base+3}, 0x20000")

def wo_voff(A, dst):
    A("v_lshrrev_b32 v3, 3, v2")
    A("v_and_b32 v4, 7, v2")
    A("v_and_b32 v5, 6, v3")
    A("v_xor_b32 v4, v4, v5")
    A("v_lshlrev_b32 v3, 11, v3")
    A("v_lshl_add_u32 v3, v4, 4, v3")
    A("s_lshl_b32 s44, s40, 7")
    A(f"v_add_u32 v{dst}, s44, v3")

def wo_issue(A, pieces, add_sgpr=None):
    for pc in pieces:
        if add_sgpr:
            A(f"s_add_u32 m0, s51, {WO_LDS + pc*1024}")
            A(f"s_add_u32 s48, s52, {pc*16384}")
        else:
            A(f"s_mov_b32 m0, {WO_LDS + pc*1024}")
            A(f"s_mov_b32 s48, {pc*16384}")
        A(f"buffer_load_dwordx4 v12, s[24:27], s48 offen lds")

WO_PART = {"A": list(range(88, 127)), "B": list(range(8, 48)), "C": list(range(48, 88)), "D": list(range(0, 8)), "E": [127]}

def touch_setup(A):
    A("s_lshl_b32 s55, s2, 3")
    A("v_and_b32 v5, 7, v2")
    A("v_add_u32 v5, s55, v5")
    A("v_lshlrev_b32 v5, 11, v5")
    A("v_lshrrev_b32 v6, 3, v2")
    A("v_lshl_add_u32 v20, v6, 7, v5")
    A("s_lshr_b32 s52, s2, 3")
    A("s_and_b32 s53, s2, 7")
    A("v_lshrrev_b32 v5, 4, v2")
    A("v_lshlrev_b32 v5, 6, v5")
    A("v_bfe_u32 v6, v2, 3, 1")
    A("v_add_u32 v5, v5, v6")
    A("s_lshl_b32 s55, s52, 1")
    A("v_add_u32 v5, s55, v5")
    A("v_mul_u32_u24 v5, 0x1800, v5")
    A("v_bfe_u32 v6, v2, 1, 2")
    A("v_lshl_add_u32 v5, v6, 11, v5")
    A("v_and_b32 v7, 1, v2")
    A("v_lshl_add_u32 v5, v7, 7, v5")
    A("s_lshl_b32 s55, s53, 8")
    A("v_add_u32 v21, s55, v5")
    A("v_mov_b32 v7, 0x7fffffff")
    A("v_cmp_eq_u32 vcc, 3, v6")
    A("s_nop 1")
    A("v_cndmask_b32 v21, v21, v7, vcc")
    A("v_cmp_le_u32 vcc, 32, v2")
    A("s_nop 1")
    A("v_cndmask_b32 v20, v20, v7, vcc")
    A("v_lshlrev_b32 v22, 7, v2")

def xloader(A):
    A("v_lshrrev_b32 v3, 3, v2")
    A("v_and_b32 v4, 7, v2")
    A("v_lshrrev_b32 v5, 1, v3")
    A("v_xor_b32 v6, v5, v4")
    A("v_xor_b32 v7, 4, v6")
    A("s_lshl_b32 s44, s40, 7")
    A("v_add_u32 v5, s44, v3")
    A("v_lshlrev_b32 v5, 11, v5")
    A("v_lshl_add_u32 v10, v6, 4, v5")
    A("v_lshl_add_u32 v11, v7, 4, v5")
    srds(A)
    def issue(c, slot):
        for p in range(16):
            if isinstance(slot, int):
                A(f"s_mov_b32 m0, {slot + p*1024}")
                A(f"s_mov_b32 s48, {c*128 + p*16384}")
            else:
                A(f"s_add_u32 m0, {slot}, {p*1024}")
                A(f"s_add_u32 s48, s47, {p*16384}")
            A(f"buffer_load_dwordx4 v{10+p%2}, s[16:19], s48 offen lds")
    issue(0, 0); issue(1, SLOT)
    wo_voff(A, 12)
    A("s_waitcnt vmcnt(16)")
    A("s_barrier")
    issue(2, 2 * SLOT)
    A("s_mov_b32 s49, 0")
    A("s_mov_b32 s47, 384")
    A("s_mov_b32 s50, 13")
    A.label("L_xl_loop")
    A("s_waitcnt vmcnt(16)")
    A("s_barrier")
    issue(None, "s49")
    A("s_add_u32 s47, s47, 128")
    A(f"s_add_u32 s49, s49, {SLOT}")
    A(f"s_cmp_ge_u32 s49, {3*SLOT}")
    A("s_cselect_b32 s49, 0, s49")
    A("s_sub_u32 s50, s50, 1")
    A("s_cmp_lg_u32 s50, 0")
    A("s_cbranch_scc1 L_xl_loop")
    wo_issue(A, WO_PART["A"][:15])
    A("s_waitcnt vmcnt(31)")
    A("s_barrier")
    wo_issue(A, WO_PART["B"][:16])
    A("s_waitcnt vmcnt(31)")
    A("s_barrier")
    wo_issue(A, WO_PART["C"][:16])
    A("s_barrier")
    wo_issue(A, WO_PART["D"])

def wloader(A):
    A("v_lshrrev_b32 v3, 3, v2")
    A("v_and_b32 v4, 7, v2")
    A("v_and_b32 v5, 2, v3")
    A("v_xor_b32 v6, v5, v4")
    A("v_xor_b32 v7, 4, v6")
    A("s_sub_u32 s43, s42, 5")
    A("s_lshl_b32 s44, s43, 5")
    A("v_add_u32 v5, s44, v3")
    A("v_mul_u32_u24 v5, 0x1800, v5")
    A("s_lshl_b32 s44, s41, 7")
    A("v_add_u32 v5, s44, v5")
    A("v_lshl_add_u32 v10, v6, 4, v5")
    A("v_lshl_add_u32 v11, v7, 4, v5")
    A("s_lshl_b32 s46, s43, 12")
    A("s_add_u32 s46, s46, 0x4000")
    srds(A)
    def issue(c, slot):
        for part in range(3):
            for kg in range(4):
                if isinstance(slot, int):
                    A(f"s_add_u32 m0, s46, {slot + part*8192 + kg*1024}")
                    A(f"s_mov_b32 s48, {c*0x60000 + kg*8*6144 + part*2048}")
                else:
                    A(f"s_add_u32 m0, {slot}, {part*8192 + kg*1024}")
                    A(f"s_add_u32 s48, s47, {kg*8*6144 + part*2048}")
                A(f"buffer_load_dwordx4 v{10+kg%2}, s[20:23], s48 offen lds")
    issue(0, 0); issue(1, SLOT)
    wo_voff(A, 12)
    A("s_mul_i32 s51, s43, 12288")
    A("s_mul_i32 s52, s43, 196608")
    A("s_waitcnt vmcnt(12)")
    A("s_barrier")
    issue(2, 2 * SLOT)
    A("s_mov_b32 s49, s46")
    A(f"s_mov_b32 s47, {3*0x60000}")
    A("s_mov_b32 s50, 13")
    A.label("L_wl_loop")
    A("s_waitcnt vmcnt(12)")
    A("s_barrier")
    issue(None, "s49")
    A("s_add_u32 s47, s47, 0x60000")
    A(f"s_add_u32 s49, s49, {SLOT}")
    A(f"s_cmp_ge_u32 s49, {3*SLOT}")
    A("s_cselect_b32 s49, s46, s49")
    A("s_sub_u32 s50, s50, 1")
    A("s_cmp_lg_u32 s50, 0")
    A("s_cbranch_scc1 L_wl_loop")
    wo_issue(A, WO_PART["A"][15:27], True)
    A("s_waitcnt vmcnt(24)")
    A("s_barrier")
    wo_issue(A, WO_PART["B"][16:28], True)
    A("s_waitcnt vmcnt(24)")
    A("s_barrier")
    wo_issue(A, WO_PART["C"][16:28], True)
    A("s_barrier")

def code_prefetch(A):
    A("s_getpc_b64 s[70:71]")
    A.label("L_pc")
    A("s_sub_u32 s70, s70, L_pc-standalone__sliding_block__prompt_kernel")
    A("s_subb_u32 s71, s71, 0")
    A("v_lshlrev_b32 v22, 7, v2")
    A("v_mov_b32 v23, L_code_end-standalone__sliding_block__prompt_kernel-4")
    for i in range(5):
        A(f"v_add_u32 v{32+i}, {8192*i}, v22")
        A(f"v_min_u32 v{32+i}, v{32+i}, v23")
        A(f"global_load_dword v{40+i}, v{32+i}, s[70:71]")

def aux(A):
    if O.codepf: code_prefetch(A)
    touch_setup(A)
    A("s_memrealtime s[60:61]")
    A("s_getreg_b32 s63, hwreg(HW_REG_XCC_ID)")
    srds(A)
    A("s_and_b32 s63, s63, 7")
    A("s_andn2_b32 s60, s60, 15")
    A("s_or_b32 s60, s60, 8")
    A("v_mov_b32 v24, s60"); A("v_mov_b32 v25, s61"); A("v_mov_b32 v26, 0"); A("v_mov_b32 v27, 0")
    A("v_mov_b32 v8, 0")
    st = {"c": 2}
    def touch():
        c = st["c"]; st["c"] += 4
        if c > 15: return
        c = min(c, 12)
        A(f"s_mov_b32 s57, {c*128}")
        A(f"s_mov_b32 s58, {c*0x60000}")
        A("buffer_load_dword v30, v21, s[20:23], s58 offen")
        A("buffer_load_dword v31, v20, s[16:19], s57 offen")
    A("s_sleep 4")
    for i in range(O.touch.get(-1, 0)): touch()
    A("s_mov_b64 exec, 1")
    A("buffer_atomic_cmpswap_x2 v[24:27], v8, s[36:39], 0 offen sc0 sc1")
    A("s_mov_b64 exec, -1")
    for c in range(17):
        if c == 16:
            A("s_waitcnt lgkmcnt(0)")
        A("s_barrier")
        if O.touch.get(c, 0):
            A("s_sleep 6")
            for i in range(O.touch[c]): touch()
        if c == 4:
            A("s_waitcnt vmcnt(0)")
            A("v_readfirstlane_b32 s56, v24")
            A("v_readfirstlane_b32 s57, v25")
            A("s_cmp_eq_u32 s56, 0")
            A("s_cselect_b32 s60, s60, s56")
            A("s_cselect_b32 s61, s61, s57")
            A("s_or_b32 s56, s60, s63")
            A("v_mov_b32 v24, s56"); A("v_mov_b32 v25, s61")
            A("s_lshl_b32 s57, s41, 4")
            A("s_add_u32 s57, s57, s40")
            A("s_lshl_b32 s57, s57, 7")
            A(f"s_add_u32 s59, s57, {XT_BASE}")
            A("s_mov_b64 exec, 1")
            A("buffer_store_dwordx2 v[24:25], v8, s[32:35], s59 offen sc1")
            A("s_mov_b64 exec, -1")
        if c == 9:
            A("s_lshl_b32 s57, s2, 13")
            A("buffer_load_dword v30, v22, s[24:27], s57 offen")
            A("s_lshl_b32 s57, s41, 6")
            A("s_lshl_b32 s58, s40, 1")
            A("s_add_u32 s57, s57, s58")
            A("s_lshl_b32 s58, s57, 13")
            for k in range(4):
                off = (k // 2) * 32 * 8192 + (k % 2) * 8192
                A(f"s_add_u32 s54, s58, {KV_BASE + off}")
                A("buffer_load_dword v30, v22, s[32:35], s54 offen")
            A("v_and_b32 v5, 1, v2")
            A("v_bfe_u32 v6, v2, 1, 1")
            A("v_lshl_add_u32 v5, v6, 5, v5")
            A("v_lshlrev_b32 v5, 7, v5")
            A("s_lshl_b32 s58, s57, 7")
            A(f"s_add_u32 s58, s58, {FKV_BASE}")
            A("buffer_load_dword v30, v5, s[32:35], s58 offen")
            A("buffer_load_dwordx2 v[26:27], v8, s[32:35], s59 offen offset:128 sc1")
            A("buffer_load_dwordx2 v[28:29], v8, s[32:35], s59 offen offset:256 sc1")
        if c == 13:
            A("s_waitcnt vmcnt(0)")
            A("v_cmp_eq_u64 vcc, v[24:25], v[26:27]")
            A("v_cmp_eq_u64 s[54:55], v[24:25], v[28:29]")
            A("s_cmp_ge_u32 s40, 15")
            A("s_cselect_b32 s56, 1, vcc_lo")
            A("s_cmp_ge_u32 s40, 14")
            A("s_cselect_b32 s57, 1, s54")
            A("s_and_b32 s56, s56, s57")
            A("s_and_b32 s56, s56, 1")
            if O.force_global:
                A("s_mov_b32 s56, 0")
            A("v_mov_b32 v24, s60"); A("v_mov_b32 v25, s61"); A("v_mov_b32 v26, s56"); A("v_mov_b32 v27, 0")
            A(f"v_mov_b32 v5, {CTL1}")
            A("ds_write_b128 v5, v[24:27]")
    A("v_mov_b32 v24, 0")
    A("v_lshlrev_b32 v5, 2, v2")
    A(f"ds_write_b32 v5, v24 offset:{CTL2}")

def read_ctl1(A, t):
    A(f"v_mov_b32 v1, {CTL1}")
    A(f"ds_read_b128 {vr(t,4)}, v1")

def take_ctl1(A, t):
    A(f"v_readfirstlane_b32 s60, v{t}")
    A(f"v_readfirstlane_b32 s61, v{t+1}")
    A(f"v_readfirstlane_b32 s62, v{t+2}")

ONES = [4, 8, 12]
OA = 16; LA = 80; PB = [96, 104]; KL = 112; QF = 144; SB = [176, 192]; R1 = 208; R2 = 112; BIAS = 240

def bias_make(A, upper):
    for r in range(16):
        ko = 8 * (r // 4) + r % 4
        c = (0.5 - ko) * BIGB
        if not upper:
            A(f"v_add_f32 v{BIAS+r}, {f32(c):#x}, v1")
        else:
            A(f"v_sub_f32 v{BIAS+r}, {f32(-c):#x}, v1")
    for r in range(16):
        A(f"v_min_f32 v{BIAS+r}, 0, v{BIAS+r}")

def tb_make(A):
    A("v_and_b32 v1, 31, v2")
    A("v_lshrrev_b32 v0, 5, v2")
    A("v_lshlrev_b32 v0, 2, v0")
    A("v_sub_u32 v1, v1, v0")
    A("v_cvt_f32_i32 v1, v1")
    A(f"v_mul_f32 v1, {f32(BIGB):#x}, v1")

class Tiles:
    def __init__(self, A, inited):
        self.A = A
        self.inited = inited
        self.n = 0
    def qk(self, t, tile, m):
        kv, qb, bias, ones = tile
        S = SB[t % 2]
        if m == 0:
            mfma32(self.A, S, kv, QF + 8 * qb, BIAS if bias else "0")
        else:
            mfma32(self.A, S, kv + 4, QF + 8 * qb + 4)
    def pv(self, t, tile, f):
        kv, qb, bias, ones = tile
        first = (f == 0 and qb not in self.inited)
        mfma32(self.A, OA + 16 * qb, kv + 8 + 4 * f, PB[t % 2] + 4 * f, "0" if first else None)
    def ls(self, t, tile, f):
        kv, qb, bias, ones = tile
        first = (f == 0 and qb not in self.inited)
        mfma16(self.A, LA + 4 * qb, ones, PB[t % 2] + 4 * f, "0" if first else None)
        if first: self.inited.add(qb)
    def run(self, tiles, hooks=None, waits=None):
        A = self.A
        hooks = hooks or {}; waits = waits or {}
        base = self.n
        if 0 in waits: A(waits[0])
        self.qk(base, tiles[0], 0); self.qk(base, tiles[0], 1)
        A("s_nop 11")
        for i, tile in enumerate(tiles):
            t = base + i
            S = SB[t % 2]; P = PB[t % 2]
            prev = tiles[i - 1] if i > 0 else None
            nxt = tiles[i + 1] if i + 1 < len(tiles) else None
            if i in hooks: hooks[i]()
            e = lambda r: A(f"v_exp_f32 v{S+r}, v{S+r}")
            c = lambda k: A(f"v_cvt_pk_bf16_f32 v{P+k}, v{S+2*k}, v{S+2*k+1}")
            e(0); e(1)
            if prev: self.pv(t - 1, prev, 1)
            for r in range(2, 6): e(r)
            if prev: self.ls(t - 1, prev, 1)
            e(6); e(7)
            if nxt:
                if (i + 1) in waits: A(waits[i + 1])
                self.qk(t + 1, nxt, 0)
            for k in range(4): c(k)
            e(8)
            if nxt: self.qk(t + 1, nxt, 1)
            for r in range(9, 13): e(r)
            self.pv(t, tile, 0)
            for r in range(13, 16): e(r)
            c(4)
            self.ls(t, tile, 0)
            for k in range(5, 8): c(k)
        A("s_nop 1")
        t = base + len(tiles) - 1
        self.pv(t, tiles[-1], 1)
        self.ls(t, tiles[-1], 1)
        self.n = base + len(tiles)

def lds_wait(A, off, val, tmp):
    lp = A.newlabel("Lw")
    A.label(lp)
    A(f"ds_read_b32 v{tmp}, v0 offset:{off}")
    A("s_waitcnt lgkmcnt(0)")
    A(f"v_readfirstlane_b32 s58, v{tmp}")
    A(f"s_cmp_lt_u32 s58, {val}")
    A(f"s_cbranch_scc1 {lp}")

def merge(A, p, rnd):
    qf = 2 * (rnd - 1) + p; qs = 2 * (rnd - 1) + 1 - p
    T = SB[0]
    A("s_lshl_b32 s58, s44, 2")
    A("v_mov_b32 v0, s58")
    if rnd == 2:
        lds_wait(A, CTL2 + 16 + (1 - p) * 8, 1, PB[0])
    A("s_lshl_b32 s58, s44, 12")
    A(f"v_add_u32 v{PB[0]}, s58, v3")
    A("s_lshl_b32 s58, s44, 8")
    A(f"v_lshlrev_b32 v{PB[0]+1}, 2, v2")
    A(f"v_add_u32 v{PB[0]+1}, s58, v{PB[0]+1}")
    A(f"v_and_b32 v{PB[0]+2}, 16, v2")
    A(f"v_cmp_ne_u32 vcc, 0, v{PB[0]+2}")
    A("s_nop 7")
    A(f"v_cndmask_b32 v{PB[0]+3}, v{LA+4*qs}, v{LA+4*qs+1}, vcc")
    A(f"v_cndmask_b32 v{PB[0]+4}, v{LA+4*qf}, v{LA+4*qf+1}, vcc")
    for i in range(4):
        A(f"ds_write_b128 v{PB[0]}, {vr(OA+16*qs+4*i,4)} offset:{M_O + p*8192 + i*1024}")
    A(f"ds_write_b32 v{PB[0]+1}, v{PB[0]+3} offset:{M_L + p*512}")
    A(f"v_mov_b32 v{PB[0]+5}, {rnd}")
    A(f"ds_write_b32 v0, v{PB[0]+5} offset:{CTL2 + p*8}")
    lds_wait(A, CTL2 + (1 - p) * 8, rnd, PB[0] + 6)
    for i in range(4):
        A(f"ds_read_b128 {vr(T+4*i,4)}, v{PB[0]} offset:{M_O + (1-p)*8192 + i*1024}")
    A(f"ds_read_b32 v{PB[0]+3}, v{PB[0]+1} offset:{M_L + (1-p)*512}")
    A("s_waitcnt lgkmcnt(0)")
    A(f"ds_write_b32 v0, v{PB[0]+5} offset:{CTL2 + 16 + p*8}")
    Lr = PB[0] + 4
    A(f"v_add_f32 v{Lr}, v{Lr}, v{PB[0]+3}")
    Ob = OA + 16 * qf
    for i in range(16):
        A(f"v_add_f32 v{Ob+i}, v{Ob+i}, v{T+i}")
    A(f"v_rcp_f32 v{PB[0]+3}, v{Lr}")
    A(f"v_add_f32 v{T}, |v{Ob}|, |v{Ob+1}|")
    A(f"v_add_f32 v{T+1}, |v{Ob+2}|, |v{Ob+3}|")
    for i in range(4, 16, 2):
        A(f"v_add_f32 v{T}, v{T}, |v{Ob+i}|")
        A(f"v_add_f32 v{T+1}, v{T+1}, |v{Ob+i+1}|")
    A(f"v_add_f32 v{T}, v{T}, v{T+1}")
    A(f"v_cmp_le_f32 vcc, {f32(2.0**-30):#x}, v{Lr}")
    A(f"s_mov_b64 s[56:57], vcc")
    A(f"v_cmp_ge_f32 vcc, {f32(2.0**30):#x}, v{Lr}")
    A("s_and_b64 s[56:57], s[56:57], vcc")
    A(f"v_cmp_gt_f32 vcc, {f32(2.0**100):#x}, v{T}")
    A("s_and_b64 s[56:57], s[56:57], vcc")
    for i in range(16):
        A(f"v_mul_f32 v{Ob+i}, v{Ob+i}, v{PB[0]+3}")
    for i in range(8):
        A(f"v_cvt_pk_bf16_f32 v{T+16+i}, v{Ob+2*i}, v{Ob+2*i+1}")
    skip = A.newlabel("Lskip")
    A("s_cmp_eq_u64 s[56:57], -1")
    if O.force_slow:
        A("s_cmp_eq_u32 s40, 99")
    if O.slow_if_global:
        A("s_cmp_eq_u32 s62, 1")
    A(f"s_cselect_b32 s58, 0, {1 << (rnd-1)}")
    A("s_or_b32 s63, s63, s58")
    A("s_cmp_lg_u32 s58, 0")
    A(f"s_cbranch_scc1 {skip}")
    o_store(A, T + 16, qf)
    A.label(skip)

def o_addr_setup(A):
    pass

def o_store(A, src, qf):
    t = PB[0] + 6
    A(f"v_and_b32 v{t}, 15, v2")
    A(f"v_lshlrev_b32 v{t}, 4, v{t}")
    A(f"v_bfe_u32 v{t+1}, v2, 4, 1")
    A(f"v_lshl_add_u32 v{t}, v{t+1}, 10, v{t}")
    A(f"v_lshrrev_b32 v{t+1}, 5, v2")
    A(f"v_lshl_add_u32 v{t}, v{t+1}, 8, v{t}")
    A(f"s_add_u32 s58, s66, {qf*65536}")
    A(f"buffer_store_dwordx4 {vr(src,4)}, v{t}, s[32:35], s58 offen sc1")
    A(f"buffer_store_dwordx4 {vr(src+4,4)}, v{t}, s[32:35], s58 offen offset:512 sc1")

def o_flag(A, qf, bit, tmp):
    skip = A.newlabel("Lskf")
    if bit:
        A(f"s_bitcmp1_b32 s63, {bit-1}")
        A(f"s_cbranch_scc1 {skip}")
    A(f"v_mov_b32 v{tmp}, s60"); A(f"v_mov_b32 v{tmp+1}, s61"); A(f"v_mov_b32 v{tmp+2}, 0")
    A(f"s_add_u32 s58, s67, {qf*32*128}")
    A("s_waitcnt vmcnt(0)")
    A("s_mov_b64 exec, 1")
    A(f"buffer_store_dwordx2 {vr(tmp,2)}, v{tmp+2}, s[32:35], s58 offen sc1")
    A("s_mov_b64 exec, -1")
    A.label(skip)

def attn_slow(A, QFr, s_qb, s_kvb, OUT):
    KF, VF, S, PF, Oo = 32, 40, 48, 64, 80
    M, Lr, T, D = 96, 97, 98, 100
    A("v_and_b32 v4, 31, v2")
    A("v_lshrrev_b32 v5, 5, v2")
    A("v_lshlrev_b32 v5, 2, v5")
    A("v_sub_u32 v4, v4, v5")
    A(f"s_sub_u32 s52, {s_qb}, 8")
    A("s_max_i32 s52, s52, 0")
    A(f"v_mov_b32 v{M}, {NEGBIG:#x}")
    A(f"v_mov_b32 v{T+1}, {NEGBIG:#x}")
    A(f"v_mov_b32 v{Lr}, 0")
    for i in range(16):
        A(f"v_mov_b32 v{Oo+i}, 0")
    A("s_movk_i32 s57, 256")
    for ps in range(2):
        A("s_mov_b32 s53, s52")
        lp = A.newlabel("Lat")
        A.label(lp)
        A("s_lshl_b32 s54, s53, 12")
        A(f"s_add_u32 s54, s54, {s_kvb}")
        A(f"buffer_load_dwordx4 {vr(KF,4)}, v3, s[32:35], s54 offen sc1")
        A(f"buffer_load_dwordx4 {vr(KF+4,4)}, v3, s[32:35], s54 offen offset:1024 sc1")
        if ps:
            A(f"buffer_load_dwordx4 {vr(VF,4)}, v3, s[32:35], s54 offen offset:2048 sc1")
            A(f"buffer_load_dwordx4 {vr(VF+4,4)}, v3, s[32:35], s54 offen offset:3072 sc1")
        A(f"s_sub_u32 s55, {s_qb}, s53")
        A("s_lshl_b32 s55, s55, 5")
        A(f"v_add_u32 v{D}, s55, v4")
        A("s_waitcnt vmcnt(0)")
        mfma32(A, S, KF, QFr, "0")
        mfma32(A, S, KF + 4, QFr + 4)
        A("s_nop 15")
        for r in range(16):
            ko = 8 * (r // 4) + r % 4
            A(f"v_subrev_u32 v{T}, {ko}, v{D}")
            A(f"v_cmp_gt_u32 vcc, s57, v{T}")
            A("s_nop 1")
            A(f"v_cndmask_b32 v{S+r}, v{T+1}, v{S+r}, vcc")
            if ps == 0:
                A(f"v_max_f32 v{M}, v{M}, v{S+r}")
            else:
                A(f"v_sub_f32 v{S+r}, v{S+r}, v{M}")
                A(f"v_exp_f32 v{S+r}, v{S+r}")
                A("s_nop 0")
                A(f"v_add_f32 v{Lr}, v{Lr}, v{S+r}")
        if ps:
            for i in range(8):
                A(f"v_cvt_pk_bf16_f32 v{PF+i}, v{S+2*i}, v{S+2*i+1}")
            A("s_nop 1")
            mfma32(A, Oo, VF, PF)
            mfma32(A, Oo, VF + 4, PF + 4)
        A("s_add_u32 s53, s53, 1")
        A(f"s_cmp_le_u32 s53, {s_qb}")
        A(f"s_cbranch_scc1 {lp}")
        R = M if ps == 0 else Lr
        A(f"v_mov_b32 v{T}, v{R}")
        A("s_nop 1")
        A(f"v_permlane32_swap_b32 v{T}, v{R}")
        A("s_nop 1")
        if ps == 0:
            A(f"v_max_f32 v{M}, v{M}, v{T}")
        else:
            A(f"v_add_f32 v{Lr}, v{Lr}, v{T}")
    A(f"v_rcp_f32 v{Lr}, v{Lr}")
    A("s_nop 15")
    for i in range(16):
        A(f"v_mul_f32 v{Oo+i}, v{Oo+i}, v{Lr}")
    for i in range(8):
        A(f"v_cvt_pk_bf16_f32 v{OUT+i}, v{Oo+2*i}, v{Oo+2*i+1}")

def acc(w, tt): return ACC + 4 * (w * 4 + tt)

def transition_kv(A):
    read_ctl1(A, 200)
    A("s_nop 3")
    pairs16 = []; pairs32 = []
    for T in range(2):
        for f in range(2):
            b = KL + 16 * T + 4 * f
            for j in range(2):
                A(f"v_cvt_pk_bf16_f32 v{b+j}, v{acc(2+f,2*T)+2*j}, v{acc(2+f,2*T)+2*j+1}")
                A(f"v_cvt_pk_bf16_f32 v{b+2+j}, v{acc(2+f,2*T+1)+2*j}, v{acc(2+f,2*T+1)+2*j+1}")
                pairs16.append((b + j, b + 2 + j))
    for T in range(2):
        for f in range(2):
            b = KL + 16 * T + 8 + 4 * f
            tt = 2 * T + f
            for j in range(2):
                A(f"v_cvt_pk_bf16_f32 v{b+j}, v{acc(4,tt)+2*j}, v{acc(4,tt)+2*j+1}")
                A(f"v_cvt_pk_bf16_f32 v{b+2+j}, v{acc(5,tt)+2*j}, v{acc(5,tt)+2*j+1}")
                pairs16.append((b + j, b + 2 + j)); pairs32.append((b + j, b + 2 + j))
    A("s_nop 1")
    for a, b in pairs16: A(f"v_permlane16_swap_b32 v{a}, v{b}")
    A("s_nop 1")
    for a, b in pairs32: A(f"v_permlane32_swap_b32 v{a}, v{b}")
    A("s_lshl_b32 s46, s41, 1")
    A("s_add_u32 s46, s46, s44")
    A("s_lshl_b32 s47, s40, 1")
    A("s_add_u32 s47, s47, s45")
    A("s_lshl_b32 s48, s46, 5")
    A("s_add_u32 s48, s48, s47")
    A("s_lshl_b32 s65, s48, 7")
    A(f"s_add_u32 s65, s65, {FKV_BASE}")
    A("s_lshl_b32 s64, s48, 13")
    A("s_add_u32 s49, s64, 4096")
    A("s_lshl_b32 s66, s40, 7")
    A("s_add_u32 s66, s66, s46")
    A("s_lshl_b32 s67, s66, 7")
    A(f"s_add_u32 s67, s67, {FO_BASE}")
    A("s_lshl_b32 s66, s66, 11")
    A(f"s_add_u32 s66, s66, {O_BASE}")
    A("s_mov_b32 s63, 0")
    A("v_lshlrev_b32 v3, 4, v2")
    A("s_waitcnt lgkmcnt(0)")
    take_ctl1(A, 200)
    A("s_nop 3")
    A("s_cmp_eq_u32 s62, 0")
    A("s_cbranch_scc1 L_kvst_g")
    for bits, lab in (("", None), ("sc1", "L_kvst_g")):
        if lab: A.label(lab)
        for i in range(8):
            A(f"buffer_store_dwordx4 {vr(KL+4*i,4)}, v3, s[32:35], s{64 if i < 4 else 49} offen offset:{1024*(i%4)} {bits}")
        if not lab: A("s_branch L_kvst_done")
    A.label("L_kvst_done")

def kv_flag(A, tmp):
    g = A.newlabel("Lkfg"); d = A.newlabel("Lkfd")
    A(f"v_mov_b32 v{tmp}, s60"); A(f"v_mov_b32 v{tmp+1}, s61"); A(f"v_mov_b32 v{tmp+2}, 0")
    A("s_waitcnt vmcnt(0)")
    A("s_mov_b64 exec, 1")
    A("s_cmp_eq_u32 s62, 0")
    A(f"s_cbranch_scc1 {g}")
    A(f"buffer_store_dwordx2 {vr(tmp,2)}, v{tmp+2}, s[32:35], s65 offen")
    A(f"s_branch {d}")
    A.label(g)
    A(f"buffer_store_dwordx2 {vr(tmp,2)}, v{tmp+2}, s[32:35], s65 offen sc1")
    A.label(d)
    A("s_mov_b64 exec, -1")

def phase2(A, p):
    A(f"s_mov_b32 s56, {QSCALE:#x}")
    A(f"s_mov_b32 s57, {QSCALE:#x}")
    for i in range(16):
        A(f"v_pk_mul_f32 {vr(ACC+2*i,2)}, {vr(ACC+2*i,2)}, s[56:57]")
    pairs = []
    for T in range(2):
        for f in range(2):
            b = QF + 8 * (2 * p + T) + 4 * f
            for j in range(2):
                A(f"v_cvt_pk_bf16_f32 v{b+j}, v{acc(f,2*T)+2*j}, v{acc(f,2*T)+2*j+1}")
                A(f"v_cvt_pk_bf16_f32 v{b+2+j}, v{acc(f,2*T+1)+2*j}, v{acc(f,2*T+1)+2*j+1}")
                pairs.append((b + j, b + 2 + j))
    A("s_nop 1")
    for a, b in pairs: A(f"v_permlane16_swap_b32 v{a}, v{b}")
    A("s_lshl_b32 s58, s44, 13")
    A("v_add_u32 v0, s58, v3")
    for k in range(4):
        A(f"ds_write_b128 v0, {vr(QF+16*p+4*k,4)} offset:{p*4096 + k*1024}")
    A("v_lshrrev_b32 v1, 4, v2")
    A("v_xor_b32 v1, v1, v2")
    A("v_and_b32 v1, 1, v1")
    A("v_add_u32 v1, -1, v1")
    A("v_and_b32 v1, 0x3f803f80, v1")
    for i in range(4): A(f"v_mov_b32 v{ONES[0]+i}, v1")
    A("s_cmp_ge_u32 s40, 1")
    A("s_cselect_b32 s56, -1, 0")
    A("s_cmp_ge_u32 s40, 2")
    A("s_cselect_b32 s57, -1, 0")
    for i in range(4): A(f"v_and_b32 v{ONES[1]+i}, s56, v1")
    for i in range(4): A(f"v_and_b32 v{ONES[2]+i}, s57, v1")
    A("s_waitcnt lgkmcnt(0)")
    A("s_barrier")
    for k in range(4):
        A(f"ds_read_b128 {vr(QF+16*(1-p)+4*k,4)}, v0 offset:{(1-p)*4096 + k*1024}")
    stamp(A, 2)
    T = Tiles(A, set())
    K0, K1 = KL, KL + 16
    o0 = ONES[0]
    if p == 0:
        local = [(K0, 0, True, o0), (K0, 1, False, o0), (K1, 1, True, o0), (K0, 2, False, o0), (K1, 2, False, o0), (K0, 3, False, o0), (K1, 3, False, o0)]
        waits = {3: "s_waitcnt lgkmcnt(0)"}
    else:
        local = [(K0, 2, True, o0), (K0, 3, False, o0), (K1, 3, True, o0)]
        waits = {}
    def h_flag():
        kv_flag(A, R1)
    def h_b18():
        A("s_waitcnt lgkmcnt(0)")
        A("s_barrier")
    T.run(local, hooks={1: h_b18, 2: h_flag}, waits=waits)
    stamp(A, 3)
    tb_make(A)
    A(f"v_mov_b32 v{R1+2}, 0")
    A("s_cmp_ge_u32 s40, 1")
    A("s_cselect_b32 s52, 256, 0")
    A("s_cmp_ge_u32 s40, 2")
    A("s_cselect_b32 s53, 512, 0")
    A("s_sub_u32 s52, s65, s52")
    A("s_sub_u32 s53, s65, s53")
    A("s_mov_b32 s54, 0")
    lp = A.newlabel("Lpk"); go = A.newlabel("Lpkg")
    A.label(lp)
    A(f"buffer_load_dwordx2 {vr(R1+4,2)}, v{R1+2}, s[32:35], s52 offen sc1")
    A(f"buffer_load_dwordx2 {vr(R1+6,2)}, v{R1+2}, s[32:35], s53 offen sc1")
    A("s_add_u32 s54, s54, 1")
    A(f"s_cmp_gt_u32 s54, {POLL_MAX}")
    A(f"s_cbranch_scc1 {go}")
    A("s_waitcnt vmcnt(0)")
    A(f"v_cmp_eq_u64 vcc, s[60:61], {vr(R1+4,2)}")
    A(f"v_cmp_eq_u64 s[56:57], s[60:61], {vr(R1+6,2)}")
    A("s_and_b64 vcc, vcc, s[56:57]")
    A(f"s_cbranch_vccz {lp}")
    A.label(go)
    A("s_waitcnt vmcnt(0)")
    stamp(A, 4)
    A("s_cmp_ge_u32 s40, 1")
    A("s_cselect_b32 s52, 0, 0x40000000")
    A("s_cmp_ge_u32 s40, 2")
    A("s_cselect_b32 s53, 0, 0x40000000")
    A("s_add_u32 s52, s52, s64"); A("s_sub_u32 s52, s52, 0x4000")
    A("s_add_u32 s53, s53, s64"); A("s_sub_u32 s53, s53, 0x8000")
    for base, sb in ((R1, "s52"), (R2, "s53")):
        for half in range(2):
            for i in range(4):
                A(f"buffer_load_dwordx4 {vr(base+16*half+4*i,4)}, v3, s[32:35], {sb} offen offset:{1024*i} sc1")
            if half == 0: A(f"s_add_u32 {sb}, {sb}, 4096")
    bias_make(A, True)
    a0, a1, b0, b1 = R1, R1 + 16, R2, R2 + 16
    o1, o2 = ONES[1], ONES[2]
    if p == 0:
        part1 = [(a0, 0, False, o1), (a0, 1, False, o1), (a1, 0, False, o1), (a1, 1, False, o1), (b0, 0, True, o2), (b1, 0, False, o2), (b1, 1, True, o2)]
        w1 = {0: "s_waitcnt vmcnt(12)", 2: "s_waitcnt vmcnt(8)", 4: "s_waitcnt vmcnt(4)", 5: "s_waitcnt vmcnt(0)"}
        part2 = [(a0, 2, False, o1), (a1, 2, False, o1), (a0, 3, False, o1), (a1, 3, False, o1)]
    else:
        part1 = [(a0, 0, False, o1), (a0, 1, False, o1), (a1, 0, False, o1), (a1, 1, False, o1), (b0, 0, False, o2), (b0, 1, False, o2), (b1, 0, False, o2), (b1, 1, False, o2)]
        w1 = {0: "s_waitcnt vmcnt(12)", 2: "s_waitcnt vmcnt(8)", 4: "s_waitcnt vmcnt(4)", 6: "s_waitcnt vmcnt(0)"}
        part2 = [(a0, 2, False, o1), (a1, 2, False, o1), (b0, 2, True, o2), (b1, 2, False, o2), (a0, 3, False, o1), (a1, 3, False, o1), (b1, 3, True, o2)]
    T.run(part1, waits=w1)
    stamp(A, 5)
    merge(A, p, 1)
    def h_of1():
        o_flag(A, p, 1, OA)
    T.run(part2, hooks={2: h_of1})
    stamp(A, 6)
    merge(A, p, 2)
    o_flag(A, 2 + p, 2, OA)
    for rnd in (1, 2):
        qf = 2 * (rnd - 1) + p
        skip = A.newlabel("Lnf")
        A(f"s_bitcmp1_b32 s63, {rnd-1}")
        A(f"s_cbranch_scc0 {skip}")
        A("s_lshl_b32 s68, s40, 2")
        A(f"s_add_u32 s68, s68, {qf}")
        A("s_lshl_b32 s69, s46, 18")
        attn_slow(A, QF + 8 * qf, "s68", "s69", 24)
        o_store(A, 24, qf)
        o_flag(A, qf, 0, 16)
        A.label(skip)
    stamp(A, 7)

def phase3(A):
    D = 16; WF = [48, 64]; OF = 96
    A("s_and_b32 s46, s42, 3")
    A("s_lshr_b32 s47, s42, 2")
    A("s_lshl_b32 s48, s41, 2")
    A("s_add_u32 s48, s48, s46")
    A("s_lshl_b32 s49, s48, 5")
    A("s_lshl_b32 s50, s47, 4")
    A("s_add_u32 s49, s49, s50")
    A("s_lshl_b32 s50, s49, 7")
    A(f"s_add_u32 s50, s50, {FO_BASE}")
    A("s_lshl_b32 s49, s49, 11")
    A(f"s_add_u32 s49, s49, {O_BASE}")
    A("v_lshlrev_b32 v3, 4, v2")
    A("v_and_b32 v4, 15, v2")
    A("v_lshlrev_b32 v4, 7, v4")
    A("v_lshrrev_b32 v5, 4, v2")
    A("v_bfe_u32 v6, v2, 2, 2")
    A("v_lshrrev_b32 v7, 1, v5")
    A("v_lshlrev_b32 v7, 4, v7")
    A("v_and_b32 v8, 1, v5")
    A("v_lshl_add_u32 v7, v8, 2, v7")
    A("v_add_u32 v7, v7, v6")
    A("v_bfe_u32 v8, v7, 1, 2")
    A("v_lshlrev_b32 v7, 7, v7")
    A("v_lshl_add_u32 v7, v8, 5, v7")
    A("v_and_b32 v6, 3, v2")
    A("v_lshl_add_u32 v7, v6, 3, v7")
    A("s_lshl_b32 s51, s47, 16")
    A(f"s_add_u32 s51, s51, {WO_LDS}")
    A("v_add_u32 v10, s51, v7")
    for ct in range(1, 4):
        A(f"v_xor_b32 v{10+ct}, {32*ct}, v10")
    A("s_waitcnt vmcnt(0)")
    A("s_barrier")
    def wreads(s, st):
        f = WF[st]
        r = []
        for ct in range(4):
            r.append(f"ds_read_b64_tr_b16 {vr(f+4*ct,2)}, v{10+ct} offset:{s*4096}")
            r.append(f"ds_read_b64_tr_b16 {vr(f+4*ct+2,2)}, v{10+ct} offset:{s*4096+1024}")
        return r
    for r in wreads(0, 0): A(r)
    A("s_mov_b32 s54, 0")
    A.label("L_po")
    A(f"buffer_load_dwordx2 v[6:7], v4, s[32:35], s50 offen sc1")
    A("s_add_u32 s54, s54, 1")
    A(f"s_cmp_gt_u32 s54, {POLL_MAX}")
    A("s_cbranch_scc1 L_pog")
    A("s_waitcnt vmcnt(0)")
    A("v_cmp_ne_u64 vcc, s[60:61], v[6:7]")
    A("s_cbranch_vccnz L_po")
    A.label("L_pog")
    A("s_waitcnt vmcnt(0)")
    stamp(A, 8)
    if O.stamps or O.probe: A("s_waitcnt lgkmcnt(0)")
    for k in range(32):
        A(f"buffer_load_dwordx4 {vr(OF+4*k,4)}, v3, s[32:35], s49 offen offset:{(k%4)*1024} sc1")
        if k % 4 == 3: A("s_add_u32 s49, s49, 4096")
    for s in range(16):
        st = s % 2
        R = wreads(s + 1, 1 - st) if s < 15 else []
        issued = 0
        for i in range(8):
            ct, hf = i // 2, i % 2
            w = []
            if i < 2: w.append(f"vmcnt({31 - (2*s+hf)})")
            if hf == 0: w.append(f"lgkmcnt({6 - 2*ct + issued})")
            if w: A("s_waitcnt " + " ".join(w))
            mfma16(A, D + 4 * (hf * 4 + ct), WF[st] + 4 * ct, OF + 4 * (2 * s + hf), "0" if s == 0 else None)
            if R: A(R[i]); issued += 1
    stamp(A, 9)
    A("s_nop 7")
    A("s_lshl_b32 s50, s46, 13")
    A("v_add_u32 v4, s50, v3")
    A("s_cmp_eq_u32 s47, 0")
    A("s_cbranch_scc1 L_out_lo")
    for i in range(8):
        A(f"ds_write_b128 v4, {vr(D+4*i,4)} offset:{1024*i}")
    A("s_waitcnt lgkmcnt(0)")
    A("s_barrier")
    A("s_branch L_fin")
    A.label("L_out_lo")
    A("v_and_b32 v5, 15, v2")
    A("s_lshl_b32 s50, s48, 5")
    A("v_add_u32 v5, s50, v5")
    A("v_lshlrev_b32 v5, 11, v5")
    A("v_bfe_u32 v6, v2, 4, 1")
    A("v_lshl_add_u32 v5, v6, 5, v5")
    A("v_lshrrev_b32 v6, 5, v2")
    A("v_lshl_add_u32 v5, v6, 4, v5")
    A("s_lshl_b32 s50, s40, 7")
    A("v_add_u32 v5, s50, v5")
    A("s_mov_b32 s51, 0x8000")
    A("s_barrier")
    for i in range(8):
        A(f"ds_read_b128 {vr(OF+4*i,4)}, v4 offset:{1024*i}")
    A("s_waitcnt lgkmcnt(0)")
    for i in range(32):
        A(f"v_add_f32 v{D+i}, v{D+i}, v{OF+i}")
    P = 64
    for hf in range(2):
        for cp in range(2):
            b = P + 8 * hf + 4 * cp
            for j in range(2):
                a0 = D + 4 * (hf * 4 + 2 * cp) + 2 * j; a1 = D + 4 * (hf * 4 + 2 * cp + 1) + 2 * j
                A(f"v_cvt_pk_bf16_f32 v{b+j}, v{a0}, v{a0+1}")
                A(f"v_cvt_pk_bf16_f32 v{b+2+j}, v{a1}, v{a1+1}")
    A("s_nop 1")
    for q in range(4):
        A(f"v_permlane16_swap_b32 v{P+4*q}, v{P+4*q+2}")
        A(f"v_permlane16_swap_b32 v{P+4*q+1}, v{P+4*q+3}")
    A("s_nop 1")
    for hf in range(2):
        for cp in range(2):
            A(f"buffer_store_dwordx4 {vr(P+8*hf+4*cp,4)}, v5, s[28:31], {'s51' if hf else '0'} offen offset:{64*cp}")

def helper_mid(A, is_x):
    read_ctl1(A, 24)
    A("s_waitcnt lgkmcnt(0)")
    take_ctl1(A, 24)
    A("s_barrier")
    A("s_barrier")
    if is_x: wo_issue(A, WO_PART["E"])

def main(out):
    A = Asm()
    name = "standalone__sliding_block__prompt_kernel"
    A.raw(HEADER_COMMENT.rstrip())
    A.raw(f"; @launch grid=(256,1,1) block=(512,1,1) lds=163840")
    A.raw('.amdgcn_target "amdgcn-amd-amdhsa--gfx950"')
    A.raw(".text")
    kernel_begin(A, name)
    prologue(A)
    A("s_cmp_eq_u32 s42, 4")
    A("s_cbranch_scc1 L_xl")
    A("s_cmp_eq_u32 s42, 7")
    A("s_cbranch_scc1 L_aux")
    A("s_cmp_ge_u32 s42, 5")
    A("s_cbranch_scc1 L_wl")
    p1.compute_setup(A)
    tb_make(A)
    bias_make(A, False)
    srds(A)
    p1.compute(A)
    stamp(A, 1)
    transition_kv(A)
    A("s_cmp_eq_u32 s45, 1")
    A("s_cbranch_scc1 L_p1")
    phase2(A, 0)
    A("s_branch L_p3")
    A.label("L_p1")
    phase2(A, 1)
    A("s_branch L_p3")
    A.label("L_xl")
    xloader(A)
    helper_mid(A, True)
    A("s_branch L_p3")
    A.label("L_wl")
    wloader(A)
    helper_mid(A, False)
    A("s_branch L_p3")
    A.label("L_aux")
    aux(A)
    helper_mid(A, False)
    A.label("L_p3")
    phase3(A)
    A.label("L_fin")
    if O.probe:
        i, j = O.probe
        A("s_cmp_ge_u32 s42, 4")
        A("s_cbranch_scc1 L_end")
        A("s_waitcnt vmcnt(0)")
        stamp(A, 10)
        A("s_waitcnt lgkmcnt(0)")
        A(f"s_sub_u32 s46, s{80+2*j}, s{80+2*i}")
        A("s_add_u32 s46, s46, s100")
        A.label("L_spin")
        A("s_memrealtime s[48:49]")
        A("s_waitcnt lgkmcnt(0)")
        A("s_sub_u32 s50, s48, s46")
        A("s_cmp_lt_i32 s50, 0")
        A("s_cbranch_scc1 L_spin")
    if O.stamps:
        A("s_waitcnt vmcnt(0)")
        stamp(A, 10)
        A("s_waitcnt lgkmcnt(0)")
        A("s_lshl_b32 s46, s2, 3")
        A("s_add_u32 s46, s46, s42")
        A("s_lshl_b32 s46, s46, 6")
        A(f"s_add_u32 s46, s46, {ST_BASE}")
        A("v_mov_b32 v3, 0")
        A("s_mov_b64 exec, 1")
        for i in range(11):
            A(f"v_mov_b32 v4, s{80+2*i}")
            A(f"buffer_store_dword v4, v3, s[32:35], s46 offen offset:{4*i}")
        A("v_mov_b32 v4, s62")
        A(f"buffer_store_dword v4, v3, s[32:35], s46 offen offset:44")
    A.label("L_end")
    A("s_endpgm")
    A.label("L_code_end")
    A.raw('.section .rodata,"a"')
    kernel_desc(A, name, 256, 102, 256)
    open(out, "w").write(A.text())

if __name__ == "__main__":
    for a in sys.argv[2:]:
        k, v = a.split("=")
        setattr(O, k, eval(v))
    main(sys.argv[1])
```

```python
import sys, struct
from asmlib import *
import p1
from p1 import SLOT, ACC, mfma16

def f32(x): return struct.unpack("<I", struct.pack("<f", x))[0]

KV_BASE = 0
O_BASE = 8 << 20
FKV_BASE = 12 << 20
FO_BASE = 13 << 20
ST_BASE = 16 << 20
WS_BYTES = 268435456
QSCALE = 0x3e8293ee
NEGBIG = 0xf149f2ca
BIGB = 1e30
WO_LDS = 32768
CTL1 = 162816
M_O = 0
QX = 16384 + 1024
M_L = 16384
FL = 17408
F_Q, F_QACK, F_FULL, F_ACK, F_RDY, F_WO, F_R, F_PUB, F_KVL, F_O1, F_O2, F_HR, F_HD, F_M1 = 0, 16, 32, 48, 64, 80, 96, 112, 128, 144, 148, 160, 176, 192
POLL_MAX = 400000

class Opt:
    stamps = False
    touch = {-1: 1, 1: 1, 5: 1, 9: 1}
    force_slow = False
    probe = None
    out_sc1 = True
    psleep = 2
O = Opt()

def mfma32(A, d, a, b, c=None):
    cs = vr(d, 16) if c is None else (c if isinstance(c, str) else vr(c, 16))
    A(f"v_mfma_f32_32x32x16_bf16 {vr(d,16)}, {vr(a,4)}, {vr(b,4)}, {cs}")

def stamp(A, idx, wait=False):
    if O.stamps or O.probe:
        A(f"s_memrealtime s[{80+2*idx}:{81+2*idx}]")
        if wait: A("s_waitcnt lgkmcnt(0)")

def prologue(A):
    A("s_cmp_ge_u32 s2, 256")
    A("s_cbranch_scc1 L_end")
    A("s_load_dwordx8 s[4:11], s[0:1], 0")
    A("s_load_dwordx4 s[12:15], s[0:1], 32")
    stamp(A, 0)
    A("s_and_b32 s43, s2, 7")
    A("s_lshr_b32 s44, s2, 3")
    A("s_and_b32 s40, s44, 15")
    A("s_lshr_b32 s44, s44, 4")
    A("s_lshl_b32 s41, s43, 1")
    A("s_add_u32 s41, s41, s44")
    A("v_lshrrev_b32 v1, 6, v0")
    A("v_and_b32 v2, 63, v0")
    A("v_readfirstlane_b32 s42, v1")

SRDS = {"x": (16, 4, 0x400000), "w": (20, 6, 0x600000), "wo": (24, 8, 0x200000), "out": (28, 10, 0x400000), "ws": (32, 14, WS_BYTES), "dbg": (36, 12, 256)}
def srds(A, which, wait=True):
    if wait: A("s_waitcnt lgkmcnt(0)")
    for k in which:
        base, ptr, n = SRDS[k]
        A(f"s_mov_b32 s{base}, s{ptr}")
        A(f"s_mov_b32 s{base+1}, s{ptr+1}")
        A(f"s_mov_b32 s{base+2}, {n:#x}")
        A(f"s_mov_b32 s{base+3}, 0x20000")

def wo_voff(A, dst):
    A("v_lshrrev_b32 v3, 3, v2")
    A("v_and_b32 v4, 7, v2")
    A("v_and_b32 v5, 6, v3")
    A("v_xor_b32 v4, v4, v5")
    A("v_lshlrev_b32 v3, 11, v3")
    A("v_lshl_add_u32 v3, v4, 4, v3")
    A("s_lshl_b32 s44, s40, 7")
    A(f"v_add_u32 v{dst}, s44, v3")

def wo_issue(A, pieces, add_sgpr=None):
    for pc in pieces:
        if add_sgpr:
            A(f"s_add_u32 m0, s51, {WO_LDS + pc*1024}")
            A(f"s_add_u32 s48, s52, {pc*16384}")
        else:
            A(f"s_mov_b32 m0, {WO_LDS + pc*1024}")
            A(f"s_mov_b32 s48, {pc*16384}")
        A(f"buffer_load_dwordx4 v12, s[24:27], s48 offen lds")

WO_PART = {"A": list(range(88, 127)), "B": list(range(8, 48)), "C": list(range(48, 88)), "D": list(range(0, 8)) + [127]}

def read_ctl1(A, t):
    A(f"v_mov_b32 v1, {CTL1}")
    A(f"ds_read_b64 {vr(t,2)}, v1")
def take_ctl1(A, t):
    A(f"v_readfirstlane_b32 s60, v{t}")
    A(f"v_readfirstlane_b32 s61, v{t+1}")

def xloader(A):
    A("v_lshrrev_b32 v3, 3, v2")
    A("v_and_b32 v4, 7, v2")
    A("v_lshrrev_b32 v5, 1, v3")
    A("v_xor_b32 v6, v5, v4")
    A("v_xor_b32 v7, 4, v6")
    A("s_lshl_b32 s44, s40, 7")
    A("v_add_u32 v5, s44, v3")
    A("v_lshlrev_b32 v5, 11, v5")
    A("v_lshl_add_u32 v10, v6, 4, v5")
    A("v_lshl_add_u32 v11, v7, 4, v5")
    srds(A, ["x"])
    def issue(c, slot):
        for p in range(16):
            if isinstance(slot, int):
                A(f"s_mov_b32 m0, {slot + p*1024}")
                A(f"s_mov_b32 s48, {c*128 + p*16384}")
            else:
                A(f"s_add_u32 m0, {slot}, {p*1024}")
                A(f"s_add_u32 s48, s47, {p*16384}")
            A(f"buffer_load_dwordx4 v{10+p%2}, s[16:19], s48 offen lds")
    issue(0, 0); issue(1, SLOT)
    srds(A, ["wo", "out", "ws"], False)
    wo_voff(A, 12)
    A("s_waitcnt vmcnt(16)")
    A("s_barrier")
    issue(2, 2 * SLOT)
    A("s_mov_b32 s49, 0")
    A("s_mov_b32 s47, 384")
    A("s_mov_b32 s50, 13")
    A.label("L_xl_loop")
    A("s_waitcnt vmcnt(16)")
    A("s_barrier")
    issue(None, "s49")
    A("s_add_u32 s47, s47, 128")
    A(f"s_add_u32 s49, s49, {SLOT}")
    A(f"s_cmp_ge_u32 s49, {3*SLOT}")
    A("s_cselect_b32 s49, 0, s49")
    A("s_sub_u32 s50, s50, 1")
    A("s_cmp_lg_u32 s50, 0")
    A("s_cbranch_scc1 L_xl_loop")
    A("s_waitcnt vmcnt(16)")
    A("s_barrier")
    wo_issue(A, WO_PART["B"][:16])
    A("s_waitcnt vmcnt(16)")
    A("s_barrier")
    read_ctl1(A, 24)
    A("s_waitcnt lgkmcnt(0)")
    A("s_barrier")
    take_ctl1(A, 24)

def wloader(A):
    A("v_lshrrev_b32 v3, 3, v2")
    A("v_and_b32 v4, 7, v2")
    A("v_and_b32 v5, 2, v3")
    A("v_xor_b32 v6, v5, v4")
    A("v_xor_b32 v7, 4, v6")
    A("s_sub_u32 s43, s42, 5")
    A("s_lshl_b32 s44, s43, 5")
    A("v_add_u32 v5, s44, v3")
    A("v_mul_u32_u24 v5, 0x1800, v5")
    A("s_lshl_b32 s44, s41, 7")
    A("v_add_u32 v5, s44, v5")
    A("v_lshl_add_u32 v10, v6, 4, v5")
    A("v_lshl_add_u32 v11, v7, 4, v5")
    A("s_lshl_b32 s46, s43, 12")
    A("s_add_u32 s46, s46, 0x4000")
    srds(A, ["w"])
    def issue(c, slot):
        for part in range(3):
            for kg in range(4):
                if isinstance(slot, int):
                    A(f"s_add_u32 m0, s46, {slot + part*8192 + kg*1024}")
                    A(f"s_mov_b32 s48, {c*0x60000 + kg*8*6144 + part*2048}")
                else:
                    A(f"s_add_u32 m0, {slot}, {part*8192 + kg*1024}")
                    A(f"s_add_u32 s48, s47, {kg*8*6144 + part*2048}")
                A(f"buffer_load_dwordx4 v{10+kg%2}, s[20:23], s48 offen lds")
    issue(0, 0); issue(1, SLOT)
    srds(A, ["wo", "out", "ws"], False)
    wo_voff(A, 12)
    A("s_mul_i32 s51, s43, 12288")
    A("s_mul_i32 s52, s43, 196608")
    A("s_waitcnt vmcnt(12)")
    A("s_barrier")
    issue(2, 2 * SLOT)
    A("s_mov_b32 s49, s46")
    A(f"s_mov_b32 s47, {3*0x60000}")
    A("s_mov_b32 s50, 13")
    A.label("L_wl_loop")
    A("s_waitcnt vmcnt(12)")
    A("s_barrier")
    issue(None, "s49")
    A("s_add_u32 s47, s47, 0x60000")
    A(f"s_add_u32 s49, s49, {SLOT}")
    A(f"s_cmp_ge_u32 s49, {3*SLOT}")
    A("s_cselect_b32 s49, s46, s49")
    A("s_sub_u32 s50, s50, 1")
    A("s_cmp_lg_u32 s50, 0")
    A("s_cbranch_scc1 L_wl_loop")
    A("s_waitcnt vmcnt(12)")
    A("s_barrier")
    wo_issue(A, WO_PART["B"][16:28], True)
    A("s_waitcnt vmcnt(12)")
    A("s_barrier")
    read_ctl1(A, 24)
    A("s_waitcnt lgkmcnt(0)")
    A("s_barrier")
    take_ctl1(A, 24)

def touch_setup(A):
    A("s_lshl_b32 s55, s2, 3")
    A("v_and_b32 v5, 7, v2")
    A("v_add_u32 v5, s55, v5")
    A("v_lshlrev_b32 v5, 11, v5")
    A("v_lshrrev_b32 v6, 3, v2")
    A("v_lshl_add_u32 v20, v6, 7, v5")
    A("s_lshr_b32 s52, s2, 3")
    A("s_and_b32 s53, s2, 7")
    A("v_lshrrev_b32 v5, 4, v2")
    A("v_lshlrev_b32 v5, 6, v5")
    A("v_bfe_u32 v6, v2, 3, 1")
    A("v_add_u32 v5, v5, v6")
    A("s_lshl_b32 s55, s52, 1")
    A("v_add_u32 v5, s55, v5")
    A("v_mul_u32_u24 v5, 0x1800, v5")
    A("v_bfe_u32 v6, v2, 1, 2")
    A("v_lshl_add_u32 v5, v6, 11, v5")
    A("v_and_b32 v7, 1, v2")
    A("v_lshl_add_u32 v5, v7, 7, v5")
    A("s_lshl_b32 s55, s53, 8")
    A("v_add_u32 v21, s55, v5")
    A("v_mov_b32 v7, 0x7fffffff")
    A("v_cmp_eq_u32 vcc, 3, v6")
    A("s_nop 1")
    A("v_cndmask_b32 v21, v21, v7, vcc")
    A("v_cmp_le_u32 vcc, 32, v2")
    A("s_nop 1")
    A("v_cndmask_b32 v20, v20, v7, vcc")
    A("v_lshlrev_b32 v22, 7, v2")

def aux(A):
    touch_setup(A)
    wo_voff(A, 12)
    A("s_memrealtime s[60:61]")
    srds(A, ["x", "w", "wo", "out", "ws", "dbg"])
    A("s_andn2_b32 s60, s60, 15")
    A("s_or_b32 s60, s60, 16")
    A("v_mov_b32 v24, s60"); A("v_mov_b32 v25, s61"); A("v_mov_b32 v26, 0"); A("v_mov_b32 v27, 0")
    A("v_mov_b32 v8, 0")
    st = {"c": 2}
    def touch():
        c = st["c"]; st["c"] += 4
        if c > 15: return
        c = min(c, 12)
        A(f"s_mov_b32 s57, {c*128}")
        A(f"s_mov_b32 s58, {c*0x60000}")
        A("buffer_load_dword v30, v21, s[20:23], s58 offen")
        A("buffer_load_dword v31, v20, s[16:19], s57 offen")
    A("s_sleep 4")
    for i in range(O.touch.get(-1, 0)): touch()
    A("s_cmp_lg_u32 s2, 0")
    A("s_cbranch_scc1 L_nn")
    A("s_mov_b64 exec, 1")
    A("buffer_store_dwordx2 v[24:25], v8, s[36:39], 0 offen sc1")
    A("s_mov_b64 exec, -1")
    A.label("L_nn")
    pa = list(WO_PART["A"])
    for c in range(17):
        if c == 15:
            A("s_waitcnt lgkmcnt(0)")
        A("s_barrier")
        if O.stamps == 2:
            A("s_memrealtime s[76:77]")
            A("s_waitcnt lgkmcnt(0)")
            A(f"v_mov_b32 v{40+c}, s76")
        if O.touch.get(c, 0):
            A("s_sleep 6")
            for i in range(O.touch[c]): touch()
        if c == 1:
            A("s_lshl_b32 s57, s2, 13")
            A("buffer_load_dword v30, v22, s[24:27], s57 offen")
        if c == 5:
            A("buffer_load_dwordx2 v[24:25], v8, s[36:39], 0 offen sc1")
        if c == 8:
            A("s_mov_b32 s54, 0")
            A("s_branch L_nchk")
            A.label("L_nre")
            A("buffer_load_dwordx2 v[24:25], v8, s[36:39], 0 offen sc1")
            A.label("L_nchk")
            A("s_waitcnt vmcnt(0)")
            A("v_readfirstlane_b32 s60, v24")
            A("v_readfirstlane_b32 s61, v25")
            A("s_add_u32 s54, s54, 1")
            A(f"s_cmp_gt_u32 s54, {POLL_MAX}")
            A("s_cbranch_scc1 L_nok")
            A("s_cmp_eq_u32 s60, 0")
            A("s_cbranch_scc1 L_nre")
            A.label("L_nok")
            A(f"v_mov_b32 v5, {CTL1}")
            A("ds_write_b64 v5, v[24:25]")
        if 4 <= c <= 13:
            n = 4 if c < 13 else len(pa)
            wo_issue(A, pa[:n]); pa = pa[n:]

def fl_set(A, vaddr, off, k, tmp):
    A(f"s_add_u32 s58, s60, {k}")
    A(f"v_mov_b32 v{tmp}, s58")
    A(f"ds_write_b32 v{vaddr}, v{tmp} offset:{FL + off}")

def fl_wait(A, vaddr, off, k, tmp, sleep=False):
    lp = A.newlabel("Lw")
    A(f"s_add_u32 s59, s60, {k}")
    A.label(lp)
    A(f"ds_read_b32 v{tmp}, v{vaddr} offset:{FL + off}")
    A("s_waitcnt lgkmcnt(0)")
    A(f"v_cmp_ne_u32 vcc, s59, v{tmp}")
    A(f"s_cbranch_vccnz {lp}")

ONES = [4, 8, 12]
OA = 16; LA = 80; PB = [96, 104]; KL = 112; QF = 144; SB = [176, 192]; R1 = 208; R2 = 112; BIAS = 240

def bias_make(A, upper):
    for r in range(16):
        ko = 8 * (r // 4) + r % 4
        c = (0.5 - ko) * BIGB
        if not upper: A(f"v_add_f32 v{BIAS+r}, {f32(c):#x}, v1")
        else: A(f"v_sub_f32 v{BIAS+r}, {f32(-c):#x}, v1")
    for r in range(16):
        A(f"v_min_f32 v{BIAS+r}, 0, v{BIAS+r}")

def tb_make(A, tmp):
    A("v_and_b32 v1, 31, v2")
    A(f"v_lshrrev_b32 v{tmp}, 5, v2")
    A(f"v_lshlrev_b32 v{tmp}, 2, v{tmp}")
    A(f"v_sub_u32 v1, v1, v{tmp}")
    A("v_cvt_f32_i32 v1, v1")
    A(f"v_mul_f32 v1, {f32(BIGB):#x}, v1")

class Tiles:
    def __init__(self, A, inited):
        self.A = A; self.inited = inited; self.n = 0
    def qk(self, t, tile, m):
        kv, qb, bias, ones = tile
        S = SB[t % 2]
        if m == 0: mfma32(self.A, S, kv, QF + 8 * qb, BIAS if bias else "0")
        else: mfma32(self.A, S, kv + 4, QF + 8 * qb + 4)
    def pv(self, t, tile, f):
        kv, qb, bias, ones = tile
        first = (f == 0 and qb not in self.inited)
        mfma32(self.A, OA + 16 * qb, kv + 8 + 4 * f, PB[t % 2] + 4 * f, "0" if first else None)
    def ls(self, t, tile, f):
        kv, qb, bias, ones = tile
        first = (f == 0 and qb not in self.inited)
        mfma16(self.A, LA + 4 * qb, ones, PB[t % 2] + 4 * f, "0" if first else None)
        if first: self.inited.add(qb)
    def run(self, tiles, hooks=None, waits=None):
        A = self.A
        hooks = hooks or {}; waits = waits or {}
        base = self.n
        if 0 in waits: A(waits[0])
        self.qk(base, tiles[0], 0); self.qk(base, tiles[0], 1)
        A("s_nop 11")
        for i, tile in enumerate(tiles):
            t = base + i
            S = SB[t % 2]; P = PB[t % 2]
            prev = tiles[i - 1] if i > 0 else None
            nxt = tiles[i + 1] if i + 1 < len(tiles) else None
            if i in hooks: hooks[i]()
            e = lambda r: A(f"v_exp_f32 v{S+r}, v{S+r}")
            c = lambda k: A(f"v_cvt_pk_bf16_f32 v{P+k}, v{S+2*k}, v{S+2*k+1}")
            e(0); e(1)
            if prev: self.pv(t - 1, prev, 1)
            for r in range(2, 6): e(r)
            if prev: self.ls(t - 1, prev, 1)
            e(6); e(7)
            if nxt:
                if (i + 1) in waits: A(waits[i + 1])
                self.qk(t + 1, nxt, 0)
            for k in range(4): c(k)
            e(8)
            if nxt: self.qk(t + 1, nxt, 1)
            for r in range(9, 13): e(r)
            self.pv(t, tile, 0)
            for r in range(13, 16): e(r)
            c(4)
            self.ls(t, tile, 0)
            for k in range(5, 8): c(k)
        A("s_nop 1")
        t = base + len(tiles) - 1
        self.pv(t, tiles[-1], 1)
        self.ls(t, tiles[-1], 1)
        self.n = base + len(tiles)

def merge(A, p, rnd):
    qf = 2 * (rnd - 1) + p; qs = 2 * (rnd - 1) + 1 - p
    T = SB[0]; X = PB[0]
    A("s_lshl_b32 s58, s44, 13")
    A(f"v_add_u32 v{X}, s58, v3")
    A("s_lshl_b32 s58, s44, 9")
    A(f"v_lshlrev_b32 v{X+1}, 2, v2")
    A(f"v_add_u32 v{X+1}, s58, v{X+1}")
    fl_wait(A, 0, (F_QACK if rnd == 1 else F_ACK) + (1 - p) * 8, 1, X + 2)
    A(f"v_and_b32 v{X+2}, 16, v2")
    A(f"v_cmp_ne_u32 vcc, 0, v{X+2}")
    A("s_nop 3")
    A(f"v_cndmask_b32 v{X+3}, v{LA+4*qs}, v{LA+4*qs+1}, vcc")
    A(f"v_cndmask_b32 v{X+4}, v{LA+4*qf}, v{LA+4*qf+1}, vcc")
    for i in range(4):
        A(f"ds_write_b128 v{X}, {vr(OA+16*qs+4*i,4)} offset:{M_O + p*4096 + i*1024}")
    A(f"ds_write_b32 v{X+1}, v{X+3} offset:{M_L + p*256}")
    fl_set(A, 0, F_FULL + p * 8, rnd, X + 5)
    fl_wait(A, 0, F_FULL + (1 - p) * 8, rnd, X + 6)
    for i in range(4):
        A(f"ds_read_b128 {vr(T+4*i,4)}, v{X} offset:{M_O + (1-p)*4096 + i*1024}")
    A(f"ds_read_b32 v{X+3}, v{X+1} offset:{M_L + (1-p)*256}")
    t = X + 6
    A(f"v_and_b32 v{t}, 15, v2")
    A(f"v_lshlrev_b32 v{t}, 4, v{t}")
    A(f"v_bfe_u32 v{t+1}, v2, 4, 1")
    A(f"v_lshl_add_u32 v{t}, v{t+1}, 10, v{t}")
    A(f"v_lshrrev_b32 v{t+1}, 5, v2")
    A(f"v_lshl_add_u32 v{t}, v{t+1}, 8, v{t}")
    A("s_waitcnt lgkmcnt(0)")
    A(f"ds_write_b32 v0, v{X+5} offset:{FL + F_ACK + p*8}")
    if rnd == 1:
        A(f"ds_write_b32 v0, v{X+5} offset:{FL + F_M1 + p*8}")
    Lr = X + 4
    A(f"v_add_f32 v{Lr}, v{Lr}, v{X+3}")
    Ob = OA + 16 * qf
    A(f"v_rcp_f32 v{X+3}, v{Lr}")
    for i in range(0, 16, 2):
        A(f"v_pk_add_f32 {vr(Ob+i,2)}, {vr(Ob+i,2)}, {vr(T+i,2)}")
    for i in range(0, 16, 2):
        A(f"v_pk_mul_f32 {vr(T+i,2)}, {vr(Ob+i,2)}, {vr(X+2,2)} op_sel:[0,1] op_sel_hi:[1,1]")
    for i in range(8):
        A(f"v_cvt_pk_bf16_f32 v{T+16+i}, v{T+2*i}, v{T+2*i+1}")
    A(f"s_add_u32 s58, s66, {qf*65536}")
    A(f"buffer_store_dwordx4 {vr(T+16,4)}, v{t}, s[32:35], s58 offen sc1")
    A(f"buffer_store_dwordx4 {vr(T+20,4)}, v{t}, s[32:35], s58 offen offset:512 sc1")
    A(f"v_add_f32 v{T}, |v{Ob}|, |v{Ob+1}|")
    A(f"v_add_f32 v{T+1}, |v{Ob+2}|, |v{Ob+3}|")
    for i in range(4, 16, 2):
        A(f"v_add_f32 v{T}, v{T}, |v{Ob+i}|")
        A(f"v_add_f32 v{T+1}, v{T+1}, |v{Ob+i+1}|")
    A(f"v_add_f32 v{T}, v{T}, v{T+1}")
    A(f"v_cmp_le_f32 vcc, {f32(2.0**-30):#x}, v{Lr}")
    A(f"s_mov_b64 s[56:57], vcc")
    A(f"v_cmp_ge_f32 vcc, {f32(2.0**30):#x}, v{Lr}")
    A("s_and_b64 s[56:57], s[56:57], vcc")
    A(f"v_cmp_gt_f32 vcc, {f32(2.0**100):#x}, v{T}")
    A("s_and_b64 s[56:57], s[56:57], vcc")
    A("s_cmp_eq_u64 s[56:57], -1")
    if O.force_slow:
        A("s_cmp_eq_u32 s40, 99")
    A(f"s_cselect_b32 s58, 0, {1 << (rnd-1)}")
    A("s_or_b32 s63, s63, s58")

def o_store(A, src, qf, t):
    A(f"v_and_b32 v{t}, 15, v2")
    A(f"v_lshlrev_b32 v{t}, 4, v{t}")
    A(f"v_bfe_u32 v{t+1}, v2, 4, 1")
    A(f"v_lshl_add_u32 v{t}, v{t+1}, 10, v{t}")
    A(f"v_lshrrev_b32 v{t+1}, 5, v2")
    A(f"v_lshl_add_u32 v{t}, v{t+1}, 8, v{t}")
    A(f"s_add_u32 s58, s66, {qf*65536}")
    A(f"buffer_store_dwordx4 {vr(src,4)}, v{t}, s[32:35], s58 offen sc1")
    A(f"buffer_store_dwordx4 {vr(src+4,4)}, v{t}, s[32:35], s58 offen offset:512 sc1")

def g_flag(A, soff_expr, bit, tmp):
    skip = A.newlabel("Lskf")
    if bit:
        A(f"s_bitcmp1_b32 s63, {bit-1}")
        A(f"s_cbranch_scc1 {skip}")
    A(f"v_mov_b32 v{tmp}, s60"); A(f"v_mov_b32 v{tmp+1}, s61"); A(f"v_mov_b32 v{tmp+2}, 0")
    A(soff_expr)
    A("s_waitcnt vmcnt(0)")
    A("s_mov_b64 exec, 1")
    A(f"buffer_store_dwordx2 {vr(tmp,2)}, v{tmp+2}, s[32:35], s58 offen sc1")
    A("s_mov_b64 exec, -1")
    A.label(skip)

def try_flag(A, soff_expr, donebit, skipbit, tmp, block, lds_off=None):
    skip = A.newlabel("Ltf")
    A(f"s_bitcmp1_b32 s70, {donebit}")
    A(f"s_cbranch_scc1 {skip}")
    if skipbit:
        A(f"s_bitcmp1_b32 s63, {skipbit-1}")
        A(f"s_cbranch_scc1 {skip}")
    if not block:
        A("s_getreg_b32 s58, hwreg(HW_REG_IB_STS, 0, 4)")
        A("s_cmp_lg_u32 s58, 0")
        A(f"s_cbranch_scc1 {skip}")
    A(f"v_mov_b32 v{tmp}, s60"); A(f"v_mov_b32 v{tmp+1}, s61"); A(f"v_mov_b32 v{tmp+2}, 0")
    A(soff_expr)
    A("s_waitcnt vmcnt(0)")
    A("s_mov_b64 exec, 1")
    A(f"buffer_store_dwordx2 {vr(tmp,2)}, v{tmp+2}, s[32:35], s58 offen sc1")
    A("s_mov_b64 exec, -1")
    A(f"s_bitset1_b32 s70, {donebit}")
    if lds_off is not None:
        fl_set(A, 0, lds_off, 1, tmp + 3)
    A.label(skip)

def attn_slow(A, QFr, s_qb, s_kvb, OUT):
    KF, VF, S, PF, Oo = 32, 40, 48, 64, 80
    M, Lr, T, D = 96, 97, 98, 100
    A("v_and_b32 v4, 31, v2")
    A("v_lshrrev_b32 v5, 5, v2")
    A("v_lshlrev_b32 v5, 2, v5")
    A("v_sub_u32 v4, v4, v5")
    A(f"s_sub_u32 s52, {s_qb}, 8")
    A("s_max_i32 s52, s52, 0")
    A(f"v_mov_b32 v{M}, {NEGBIG:#x}")
    A(f"v_mov_b32 v{T+1}, {NEGBIG:#x}")
    A(f"v_mov_b32 v{Lr}, 0")
    for i in range(16): A(f"v_mov_b32 v{Oo+i}, 0")
    A("s_movk_i32 s57, 256")
    for ps in range(2):
        A("s_mov_b32 s53, s52")
        lp = A.newlabel("Lat")
        A.label(lp)
        A("s_lshl_b32 s54, s53, 12")
        A(f"s_add_u32 s54, s54, {s_kvb}")
        A(f"buffer_load_dwordx4 {vr(KF,4)}, v3, s[32:35], s54 offen sc1")
        A(f"buffer_load_dwordx4 {vr(KF+4,4)}, v3, s[32:35], s54 offen offset:1024 sc1")
        if ps:
            A(f"buffer_load_dwordx4 {vr(VF,4)}, v3, s[32:35], s54 offen offset:2048 sc1")
            A(f"buffer_load_dwordx4 {vr(VF+4,4)}, v3, s[32:35], s54 offen offset:3072 sc1")
        A(f"s_sub_u32 s55, {s_qb}, s53")
        A("s_lshl_b32 s55, s55, 5")
        A(f"v_add_u32 v{D}, s55, v4")
        A("s_waitcnt vmcnt(0)")
        mfma32(A, S, KF, QFr, "0")
        mfma32(A, S, KF + 4, QFr + 4)
        A("s_nop 15")
        for r in range(16):
            ko = 8 * (r // 4) + r % 4
            A(f"v_subrev_u32 v{T}, {ko}, v{D}")
            A(f"v_cmp_gt_u32 vcc, s57, v{T}")
            A("s_nop 1")
            A(f"v_cndmask_b32 v{S+r}, v{T+1}, v{S+r}, vcc")
            if ps == 0:
                A(f"v_max_f32 v{M}, v{M}, v{S+r}")
            else:
                A(f"v_sub_f32 v{S+r}, v{S+r}, v{M}")
                A(f"v_exp_f32 v{S+r}, v{S+r}")
                A("s_nop 0")
                A(f"v_add_f32 v{Lr}, v{Lr}, v{S+r}")
        if ps:
            for i in range(8):
                A(f"v_cvt_pk_bf16_f32 v{PF+i}, v{S+2*i}, v{S+2*i+1}")
            A("s_nop 1")
            mfma32(A, Oo, VF, PF)
            mfma32(A, Oo, VF + 4, PF + 4)
        A("s_add_u32 s53, s53, 1")
        A(f"s_cmp_le_u32 s53, {s_qb}")
        A(f"s_cbranch_scc1 {lp}")
        R = M if ps == 0 else Lr
        A(f"v_mov_b32 v{T}, v{R}")
        A("s_nop 1")
        A(f"v_permlane32_swap_b32 v{T}, v{R}")
        A("s_nop 1")
        if ps == 0: A(f"v_max_f32 v{M}, v{M}, v{T}")
        else: A(f"v_add_f32 v{Lr}, v{Lr}, v{T}")
    A(f"v_rcp_f32 v{Lr}, v{Lr}")
    A("s_nop 15")
    for i in range(16): A(f"v_mul_f32 v{Oo+i}, v{Oo+i}, v{Lr}")
    for i in range(8): A(f"v_cvt_pk_bf16_f32 v{OUT+i}, v{Oo+2*i}, v{Oo+2*i+1}")

def acc(w, tt): return ACC + 4 * (w * 4 + tt)

def compute_pre(A):
    A("s_lshl_b32 s62, s41, 1")
    A("s_add_u32 s62, s62, s44")
    A("s_lshl_b32 s47, s40, 1")
    A("s_add_u32 s47, s47, s45")
    A("s_lshl_b32 s48, s62, 5")
    A("s_add_u32 s48, s48, s47")
    A("s_lshl_b32 s65, s48, 7")
    A(f"s_add_u32 s65, s65, {FKV_BASE}")
    A("s_lshl_b32 s64, s48, 13")
    A("s_add_u32 s49, s64, 4096")
    A("s_lshl_b32 s66, s40, 7")
    A("s_add_u32 s66, s66, s62")
    A("s_lshl_b32 s67, s66, 7")
    A(f"s_add_u32 s67, s67, {FO_BASE}")
    A("s_lshl_b32 s66, s66, 11")
    A(f"s_add_u32 s66, s66, {O_BASE}")
    A("s_mov_b32 s63, 0")
    A("s_mov_b32 s70, 0")
    A("v_lshlrev_b32 v3, 4, v2")
    A("v_lshrrev_b32 v1, 4, v2")
    A("v_xor_b32 v1, v1, v2")
    A("v_and_b32 v1, 1, v1")
    A("v_add_u32 v1, -1, v1")
    A("v_and_b32 v1, 0x3f803f80, v1")
    for i in range(4): A(f"v_mov_b32 v{ONES[0]+i}, v1")
    A("s_cmp_ge_u32 s40, 1")
    A("s_cselect_b32 s56, -1, 0")
    A("s_cselect_b32 s52, 0, 0x40000000")
    A("s_cmp_ge_u32 s40, 2")
    A("s_cselect_b32 s57, -1, 0")
    A("s_cselect_b32 s53, 0, 0x40000000")
    for i in range(4): A(f"v_and_b32 v{ONES[1]+i}, s56, v1")
    for i in range(4): A(f"v_and_b32 v{ONES[2]+i}, s57, v1")
    A("s_add_u32 s68, s52, s64"); A("s_sub_u32 s68, s68, 0x4000")
    A("s_add_u32 s69, s53, s64"); A("s_sub_u32 s69, s69, 0x8000")
    tb_make(A, 0)
    bias_make(A, False)
    A("s_lshl_b32 s58, s44, 2")
    A("v_mov_b32 v0, s58")

def transition_kv(A):
    pairs16 = []; pairs32 = []
    for T in range(2):
        for f in range(2):
            b = KL + 16 * T + 4 * f
            for j in range(2):
                A(f"v_cvt_pk_bf16_f32 v{b+j}, v{acc(2+f,2*T)+2*j}, v{acc(2+f,2*T)+2*j+1}")
                A(f"v_cvt_pk_bf16_f32 v{b+2+j}, v{acc(2+f,2*T+1)+2*j}, v{acc(2+f,2*T+1)+2*j+1}")
                pairs16.append((b + j, b + 2 + j))
    A("s_nop 1")
    for a, b in pairs16: A(f"v_permlane16_swap_b32 v{a}, v{b}")
    for i in (0, 1, 4, 5):
        A(f"buffer_store_dwordx4 {vr(KL+4*i,4)}, v3, s[32:35], s{64 if i < 4 else 49} offen offset:{1024*(i%4)} sc1")
    pairs16 = []
    for T in range(2):
        for f in range(2):
            b = KL + 16 * T + 8 + 4 * f
            tt = 2 * T + f
            for j in range(2):
                A(f"v_cvt_pk_bf16_f32 v{b+j}, v{acc(4,tt)+2*j}, v{acc(4,tt)+2*j+1}")
                A(f"v_cvt_pk_bf16_f32 v{b+2+j}, v{acc(5,tt)+2*j}, v{acc(5,tt)+2*j+1}")
                pairs16.append((b + j, b + 2 + j))
    A("s_nop 1")
    for a, b in pairs16: A(f"v_permlane16_swap_b32 v{a}, v{b}")
    for a, b in pairs16: A(f"v_permlane32_swap_b32 v{a}, v{b}")
    for i in (2, 3, 6, 7):
        A(f"buffer_store_dwordx4 {vr(KL+4*i,4)}, v3, s[32:35], s{64 if i < 4 else 49} offen offset:{1024*(i%4)} sc1")

def phase2(A, p):
    A(f"s_mov_b32 s56, {QSCALE:#x}")
    A(f"s_mov_b32 s57, {QSCALE:#x}")
    for i in range(16):
        A(f"v_pk_mul_f32 {vr(ACC+2*i,2)}, {vr(ACC+2*i,2)}, s[56:57]")
    pairs = []
    for T in range(2):
        for f in range(2):
            b = QF + 8 * (2 * p + T) + 4 * f
            for j in range(2):
                A(f"v_cvt_pk_bf16_f32 v{b+j}, v{acc(f,2*T)+2*j}, v{acc(f,2*T)+2*j+1}")
                A(f"v_cvt_pk_bf16_f32 v{b+2+j}, v{acc(f,2*T+1)+2*j}, v{acc(f,2*T+1)+2*j+1}")
                pairs.append((b + j, b + 2 + j))
    A("s_lshl_b32 s58, s44, 13")
    A(f"v_add_u32 v{R1}, s58, v3")
    for a, b in pairs: A(f"v_permlane16_swap_b32 v{a}, v{b}")
    for k in range(4):
        A(f"ds_write_b128 v{R1}, {vr(QF+16*p+4*k,4)} offset:{M_O + p*4096 + k*1024}")
    fl_set(A, 0, F_Q + p * 8, 1, R1 + 1)
    stamp(A, 2)
    T = Tiles(A, set())
    K0, K1 = KL, KL + 16
    o0 = ONES[0]
    def h_q():
        fl_wait(A, 0, F_Q + (1 - p) * 8, 1, R1 + 2)
        for k in range(4):
            A(f"ds_read_b128 {vr(QF+16*(1-p)+4*k,4)}, v{R1} offset:{M_O + (1-p)*4096 + k*1024}")
    def kvflag(block):
        try_flag(A, "s_mov_b32 s58, s65", 0, 0, R1 + 4, block, F_PUB + p * 8)
    def h_qack():
        A("s_waitcnt lgkmcnt(0)")
        A(f"ds_write_b32 v0, v{R1+1} offset:{FL + F_QACK + p*8}")
        kvflag(False)
    if p == 0:
        local = [(K0, 0, True, o0), (K0, 1, False, o0), (K1, 1, True, o0), (K0, 2, False, o0), (K1, 2, False, o0), (K0, 3, False, o0), (K1, 3, False, o0)]
    else:
        local = [(K0, 2, True, o0), (K0, 3, False, o0), (K1, 3, True, o0)]
    hk = {1: h_q, 2: h_qack}
    for i in range(3, len(local)): hk[i] = lambda: kvflag(False)
    T.run(local, hooks=hk)
    stamp(A, 3)
    kvflag(False)
    tb_make(A, R1)
    bias_make(A, True)
    kvflag(True)
    A(f"v_mov_b32 v{R1+1}, 0")
    fl_wait(A, R1 + 1, F_RDY, 1, R1)
    stamp(A, 4)
    a0, a1, b0, b1 = R1, R1 + 16, R2, R2 + 16
    o1, o2 = ONES[1], ONES[2]
    def ld(base, sb, off):
        if off: A(f"s_add_u32 s58, {sb}, {off}")
        for i in range(4):
            A(f"buffer_load_dwordx4 {vr(base+4*i,4)}, v3, s[32:35], {'s58' if off else sb} offen offset:{1024*i} sc1")
    def h_kvl():
        fl_set(A, 0, F_KVL + p * 8, 1, 1)
    if p == 0:
        ld(b0, "s69", 0); ld(a0, "s68", 0); ld(a1, "s68", 4096); ld(b1, "s69", 4096)
        def h_re():
            ld(b0, "s69", 8192 + 4096)
        part1 = [(b0, 0, True, o2), (a0, 0, False, o1), (a0, 1, False, o1), (a1, 0, False, o1), (a1, 1, False, o1), (b1, 0, False, o2), (b1, 1, True, o2)]
        w1 = {0: "s_waitcnt vmcnt(12)", 1: "s_waitcnt vmcnt(8)", 3: "s_waitcnt vmcnt(8)", 5: "s_waitcnt vmcnt(0)"}
        h1 = {2: h_re, 5: h_kvl}
        part2 = [(a0, 2, False, o1), (a1, 2, False, o1), (b0, 2, False, o2), (a0, 3, False, o1), (a1, 3, False, o1), (b0, 3, True, o2)]
    else:
        ld(a0, "s68", 0); ld(a1, "s68", 4096); ld(b0, "s69", 0); ld(b1, "s69", 4096)
        part1 = [(a0, 0, False, o1), (a0, 1, False, o1), (a1, 0, False, o1), (a1, 1, False, o1), (b0, 0, False, o2), (b0, 1, False, o2), (b1, 0, False, o2), (b1, 1, False, o2)]
        w1 = {0: "s_waitcnt vmcnt(12)", 2: "s_waitcnt vmcnt(8)", 4: "s_waitcnt vmcnt(4)", 5: "s_waitcnt vmcnt(0)"}
        h1 = {5: h_kvl}
        part2 = [(a0, 2, False, o1), (a1, 2, False, o1), (b0, 2, True, o2), (a0, 3, False, o1), (a1, 3, False, o1)]
    T.run(part1, waits=w1, hooks=h1)
    stamp(A, 5)
    merge(A, p, 1)
    def of1(block):
        try_flag(A, f"s_add_u32 s58, s67, {p*4096}", 1, 1, OA, block)
    T.run(part2, hooks={i: (lambda: of1(False)) for i in range(2, len(part2))})
    stamp(A, 6)
    of1(True)
    merge(A, p, 2)
    try_flag(A, f"s_add_u32 s58, s67, {(2+p)*4096}", 2, 2, OA, True)
    for rnd in (1, 2):
        qf = 2 * (rnd - 1) + p
        skip = A.newlabel("Lnf")
        A(f"s_bitcmp1_b32 s63, {rnd-1}")
        A(f"s_cbranch_scc0 {skip}")
        A("s_lshl_b32 s68, s40, 2")
        A(f"s_add_u32 s68, s68, {qf}")
        A("s_lshl_b32 s69, s62, 18")
        attn_slow(A, QF + 8 * qf, "s68", "s69", 24)
        o_store(A, 24, qf, 102)
        g_flag(A, f"s_add_u32 s58, s67, {qf*4096}", 0, 16)
        A.label(skip)
    stamp(A, 7)

def wo_addr(A, kh_sgpr):
    A("v_lshrrev_b32 v5, 4, v2")
    A("v_bfe_u32 v6, v2, 2, 2")
    A("v_lshrrev_b32 v7, 1, v5")
    A("v_lshlrev_b32 v7, 4, v7")
    A("v_and_b32 v8, 1, v5")
    A("v_lshl_add_u32 v7, v8, 2, v7")
    A("v_add_u32 v7, v7, v6")
    A("v_bfe_u32 v8, v7, 1, 2")
    A("v_lshlrev_b32 v7, 7, v7")
    A("v_lshl_add_u32 v7, v8, 5, v7")
    A("v_and_b32 v6, 3, v2")
    A("v_lshl_add_u32 v7, v6, 3, v7")
    if kh_sgpr:
        A(f"s_lshl_b32 s51, {kh_sgpr}, 16")
        A(f"s_add_u32 s51, s51, {WO_LDS}")
        A("v_add_u32 v10, s51, v7")
    else:
        A(f"v_add_u32 v10, {WO_LDS}, v7")
    for ct in range(1, 4):
        A(f"v_xor_b32 v{10+ct}, {32*ct}, v10")

def wo_ready_wait(A, tmp):
    A(f"v_and_b32 v{tmp}, 3, v2")
    A(f"v_lshlrev_b32 v{tmp}, 2, v{tmp}")
    fl_wait(A, tmp, F_WO, 1, tmp + 1)

def poll_o(A, lab, voff, soff):
    A("s_mov_b32 s54, 0")
    A.label(lab)
    A(f"buffer_load_dwordx2 v[6:7], v{voff}, s[32:35], {soff} offen sc1")
    A("s_add_u32 s54, s54, 1")
    A(f"s_cmp_gt_u32 s54, {POLL_MAX}")
    A(f"s_cbranch_scc1 {lab}g")
    A("s_waitcnt vmcnt(0)")
    A("v_cmp_ne_u64 vcc, s[60:61], v[6:7]")
    A(f"s_cbranch_vccnz {lab}")
    A.label(lab + "g")
    A("s_waitcnt vmcnt(0)")

def out_addr(A, row_sgpr):
    A("v_and_b32 v5, 15, v2")
    A(f"v_add_u32 v5, {row_sgpr}, v5")
    A("v_lshlrev_b32 v5, 11, v5")
    A("v_bfe_u32 v6, v2, 4, 1")
    A("v_lshl_add_u32 v5, v6, 5, v5")
    A("v_lshrrev_b32 v6, 5, v2")
    A("v_lshl_add_u32 v5, v6, 4, v5")
    A("s_lshl_b32 s50, s40, 7")
    A("v_add_u32 v5, s50, v5")

def out_store(A, D, P, nh):
    bits = "sc1" if O.out_sc1 else ""
    for hf in range(nh):
        for cp in range(2):
            b = P + 8 * hf + 4 * cp
            for j in range(2):
                a0 = D + 4 * (hf * 4 + 2 * cp) + 2 * j; a1 = D + 4 * (hf * 4 + 2 * cp + 1) + 2 * j
                A(f"v_cvt_pk_bf16_f32 v{b+j}, v{a0}, v{a0+1}")
                A(f"v_cvt_pk_bf16_f32 v{b+2+j}, v{a1}, v{a1+1}")
    A("s_nop 1")
    for q in range(2 * nh):
        A(f"v_permlane16_swap_b32 v{P+4*q}, v{P+4*q+2}")
        A(f"v_permlane16_swap_b32 v{P+4*q+1}, v{P+4*q+3}")
    A("s_mov_b32 s51, 0x8000")
    for hf in range(nh):
        for cp in range(2):
            A(f"buffer_store_dwordx4 {vr(P+8*hf+4*cp,4)}, v5, s[28:31], {'s51' if hf else '0'} offen offset:{64*cp} {bits}")

def phase3_body(A, tag, rt0, oflag, gate, f_r, done_flag):
    D = 16; WF = [48, 64]; OF = 96
    A("s_lshl_b32 s48, s41, 2")
    A("s_add_u32 s48, s48, s44")
    if rt0: A(f"s_add_u32 s48, s48, {rt0}")
    A("s_lshl_b32 s49, s48, 5")
    A("s_lshl_b32 s50, s45, 4")
    A("s_add_u32 s49, s49, s50")
    A("s_lshl_b32 s49, s49, 11")
    A(f"s_add_u32 s49, s49, {O_BASE}")
    wo_addr(A, "s45")
    A("s_lshl_b32 s52, s48, 5")
    A("s_lshl_b32 s53, s45, 4")
    A("s_add_u32 s52, s52, s53")
    out_addr(A, "s52")
    A("s_lshl_b32 s58, s44, 13")
    A("v_add_u32 v4, s58, v3")
    wo_ready_wait(A, 14)
    def wreads(s, st):
        f = WF[st]; r = []
        for ct in range(4):
            r.append(f"ds_read_b64_tr_b16 {vr(f+4*ct,2)}, v{10+ct} offset:{s*4096}")
            r.append(f"ds_read_b64_tr_b16 {vr(f+4*ct+2,2)}, v{10+ct} offset:{s*4096+1024}")
        return r
    for r in wreads(0, 0): A(r)
    A("v_mov_b32 v14, 0")
    fl_wait(A, 14, oflag, 1, 15)
    stamp(A, 8, True)
    for k in range(32):
        A(f"buffer_load_dwordx4 {vr(OF+4*k,4)}, v3, s[32:35], s49 offen offset:{(k%4)*1024} sc1")
        if k % 4 == 3: A("s_add_u32 s49, s49, 4096")
    for s in range(16):
        st = s % 2
        R = wreads(s + 1, 1 - st) if s < 15 else []
        issued = 0
        for i in range(8):
            ct, hf = i // 2, i % 2
            w = []
            if i < 2: w.append(f"vmcnt({31 - (2*s+hf)})")
            if hf == 0: w.append(f"lgkmcnt({6 - 2*ct + issued})")
            if w: A("s_waitcnt " + " ".join(w))
            mfma16(A, D + 4 * (hf * 4 + ct), WF[st] + 4 * ct, OF + 4 * (2 * s + hf), "0" if s == 0 else None)
            if R: A(R[i]); issued += 1
    stamp(A, 9)
    A("v_and_b32 v14, 1, v2")
    A("v_lshl_add_u32 v14, v14, 3, v0")
    fl_wait(A, 14, gate[0], gate[1], 15)
    A("s_cmp_eq_u32 s45, 1")
    A(f"s_cbranch_scc1 L_{tag}_p1")
    for p in range(2):
        if p: A.label(f"L_{tag}_p1")
        for i in range(4):
            A(f"ds_write_b128 v4, {vr(D+16*(1-p)+4*i,4)} offset:{M_O + p*4096 + 1024*i}")
        fl_set(A, 0, f_r + p * 8, 1, 14)
        fl_wait(A, 0, f_r + (1 - p) * 8, 1, 15)
        for i in range(4):
            A(f"ds_read_b128 {vr(OF+4*i,4)}, v4 offset:{M_O + (1-p)*4096 + 1024*i}")
        A("s_waitcnt lgkmcnt(0)")
        if done_flag is not None:
            A(f"ds_write_b32 v0, v14 offset:{FL + done_flag + p*8}")
        for i in range(0, 16, 2):
            A(f"v_pk_add_f32 {vr(D+16*p+i,2)}, {vr(D+16*p+i,2)}, {vr(OF+i,2)}")
        out_store(A, D + 16 * p, 64, 1)
        A("s_branch L_fin")

def poll_g(A, lab, voff, soff):
    A("s_mov_b32 s54, 0")
    A.label(lab)
    A(f"buffer_load_dwordx2 v[6:7], v{voff}, s[32:35], {soff} offen sc1")
    A("s_add_u32 s54, s54, 1")
    A(f"s_cmp_gt_u32 s54, {POLL_MAX}")
    A(f"s_cbranch_scc1 {lab}g")
    A("s_waitcnt vmcnt(0)")
    A("v_cmp_ne_u64 vcc, s[60:61], v[6:7]")
    A(f"s_cbranch_vccz {lab}g")
    if O.psleep: A(f"s_sleep {O.psleep}")
    A(f"s_branch {lab}")
    A.label(lab + "g")

def phase3_compute(A):
    A("s_cmp_lg_u32 s42, 0")
    A("s_cbranch_scc1 L_np2")
    A("v_lshlrev_b32 v4, 7, v2")
    A("s_lshl_b32 s50, s41, 14")
    A(f"s_add_u32 s50, s50, {FO_BASE + 8192}")
    poll_g(A, "L_po2", 4, "s50")
    A("v_mov_b32 v14, 0")
    fl_set(A, 14, F_O2, 1, 15)
    A.label("L_np2")
    phase3_body(A, "c3", 2, F_O2, (F_HD, 1), F_R, None)

def helper_tail(A):
    A("s_sub_u32 s43, s42, 4")
    A("s_and_b32 s44, s43, 1")
    A("s_lshr_b32 s45, s43, 1")
    A("v_lshlrev_b32 v3, 4, v2")
    A("v_and_b32 v14, 3, v2")
    A("v_lshlrev_b32 v14, 2, v14")
    A("s_cmp_lg_u32 s42, 7")
    A("s_cbranch_scc1 L_nkp")
    A("s_lshl_b32 s46, s41, 6")
    A("s_lshl_b32 s47, s40, 1")
    A("s_add_u32 s46, s46, s47")
    A("s_lshl_b32 s46, s46, 7")
    A(f"s_add_u32 s46, s46, {FKV_BASE - 512}")
    A("v_bfe_u32 v4, v2, 2, 1")
    A("v_xor_b32 v4, 1, v4")
    A("s_cmp_ge_u32 s40, 2")
    A("s_cselect_b32 s47, 0, 1")
    A("v_or_b32 v4, s47, v4")
    A("v_lshlrev_b32 v4, 1, v4")
    A("v_and_b32 v5, 1, v2")
    A("v_add_u32 v4, v4, v5")
    A("v_bfe_u32 v5, v2, 1, 1")
    A("v_lshl_add_u32 v4, v5, 5, v4")
    A("v_lshlrev_b32 v4, 7, v4")
    A("s_cmp_eq_u32 s40, 0")
    A("s_cbranch_scc1 L_pkg")
    fl_wait(A, 14, F_PUB, 1, 15)
    poll_g(A, "L_pk", 4, "s46")
    A("v_mov_b32 v16, 0")
    fl_set(A, 16, F_RDY, 1, 15)
    A.label("L_nkp")
    fl_wait(A, 14, F_KVL, 1, 15)
    A("s_mul_i32 s51, s43, 10240")
    A("s_mul_i32 s52, s43, 163840")
    wo_issue(A, list(range(48, 58)), True)
    A("s_lshl_b32 s51, s43, 11")
    A("s_lshl_b32 s52, s43, 15")
    wo_issue(A, [0, 1], True)
    wo_issue(A, [127])
    A("s_lshl_b32 s58, s43, 2")
    A("v_mov_b32 v16, s58")
    A("s_waitcnt vmcnt(0)")
    fl_set(A, 16, F_WO, 1, 15)
    A("s_lshl_b32 s58, s44, 2")
    A("v_mov_b32 v0, s58")
    A("s_cmp_lg_u32 s42, 7")
    A("s_cbranch_scc1 L_np1")
    fl_wait(A, 14, F_M1, 1, 15)
    A("v_lshlrev_b32 v4, 7, v2")
    A("s_lshl_b32 s50, s41, 14")
    A(f"s_add_u32 s50, s50, {FO_BASE}")
    poll_g(A, "L_po1", 4, "s50")
    A("v_mov_b32 v14, 0")
    fl_set(A, 14, F_O1, 1, 15)
    A.label("L_np1")
    phase3_body(A, "h3", 0, F_O1, (F_ACK, 2), F_HR, F_HD)

def compute_p1(A):
    A("s_mov_b32 s47, 0")
    A("s_mov_b32 s50, 16")
    lp = A.newlabel("Lmm")
    A.label(lp)
    A("s_waitcnt lgkmcnt(0)")
    p1.step(A, 1, p1.reads(0, 0), 4, extra={3: ["s_barrier"]})
    upd = [f"s_add_u32 s47, s47, {SLOT}", f"s_cmp_ge_u32 s47, {3*SLOT}", "s_cselect_b32 s47, 0, s47"]
    ex = {18: upd}
    for i in range(4):
        ex[19 + i] = [f"v_add_u32 v{p1.XA+i}, s47, v{p1.XA0+i}"]
    ex[23] = ["s_sub_u32 s50, s50, 1", "s_cmp_lg_u32 s50, 0"]
    p1.step(A, 0, p1.reads(1, 1), 0, extra=ex, pre_done=0)
    A(f"s_cbranch_scc1 {lp}")
    A("s_waitcnt lgkmcnt(0)")
    read_ctl1(A, 200)
    order = list(range(8, 24)) + list(range(0, 8))
    for n, i in enumerate(order):
        p1.mf(A, i, 1)
        if n == 5:
            A("s_waitcnt lgkmcnt(0)")
            A("s_barrier")
            take_ctl1(A, 200)

def main(out):
    A = Asm()
    name = "standalone__sliding_block__prompt_kernel"
    A.raw(HEADER_COMMENT.rstrip())
    A.raw(f"; @launch grid=(256,1,1) block=(512,1,1) lds=163840")
    A.raw('.amdgcn_target "amdgcn-amd-amdhsa--gfx950"')
    A.raw(".text")
    kernel_begin(A, name)
    prologue(A)
    A("s_cmp_eq_u32 s42, 4")
    A("s_cbranch_scc1 L_xl")
    A("s_cmp_eq_u32 s42, 7")
    A("s_cbranch_scc1 L_aux")
    A("s_cmp_ge_u32 s42, 5")
    A("s_cbranch_scc1 L_wl")
    p1.compute_setup(A)
    compute_pre(A)
    srds(A, ["out", "ws"])
    compute_p1(A)
    stamp(A, 1)
    transition_kv(A)
    A("s_cmp_eq_u32 s45, 1")
    A("s_cbranch_scc1 L_p1")
    phase2(A, 0)
    A("s_branch L_p3")
    A.label("L_p1")
    phase2(A, 1)
    A.label("L_p3")
    phase3_compute(A)
    A.label("L_xl")
    xloader(A)
    A("s_branch L_ht")
    A.label("L_wl")
    wloader(A)
    A("s_branch L_ht")
    A.label("L_aux")
    aux(A)
    if O.stamps == 2:
        A("s_lshl_b32 s46, s2, 7")
        A(f"s_add_u32 s46, s46, {ST_BASE + 0x40000}")
        A("v_mov_b32 v3, 0")
        A("v_mov_b32 v39, s80")
        for i in range(18):
            A(f"buffer_store_dword v{39+i}, v3, s[32:35], s46 offen offset:{4*i}")
    A.label("L_ht")
    helper_tail(A)
    A.label("L_fin")
    if O.probe:
        i, j = O.probe
        A("s_cmp_ge_u32 s42, 4")
        A("s_cbranch_scc1 L_end")
        A("s_waitcnt vmcnt(0)")
        stamp(A, 10, True)
        A(f"s_sub_u32 s46, s{80+2*j}, s{80+2*i}")
        A("s_add_u32 s46, s46, s100")
        A.label("L_spin")
        A("s_memrealtime s[48:49]")
        A("s_waitcnt lgkmcnt(0)")
        A("s_sub_u32 s50, s48, s46")
        A("s_cmp_lt_i32 s50, 0")
        A("s_cbranch_scc1 L_spin")
    if O.stamps:
        A("s_waitcnt vmcnt(0)")
        stamp(A, 10, True)
        A("s_lshl_b32 s46, s2, 3")
        A("s_add_u32 s46, s46, s42")
        A("s_lshl_b32 s46, s46, 6")
        A(f"s_add_u32 s46, s46, {ST_BASE}")
        A("v_mov_b32 v3, 0")
        A("s_mov_b64 exec, 1")
        for i in range(11):
            A(f"v_mov_b32 v4, s{80+2*i}")
            A(f"buffer_store_dword v4, v3, s[32:35], s46 offen offset:{4*i}")
    A.label("L_end")
    A("s_endpgm")
    A.raw('.section .rodata,"a"')
    kernel_desc(A, name, 256, 102, 256)
    open(out, "w").write(A.text())

if __name__ == "__main__":
    for a in sys.argv[2:]:
        k, v = a.split("=")
        setattr(O, k, eval(v))
    main(sys.argv[1])
```

```python
import sys, struct
from asmlib import *
import p1
from p1 import SLOT, ACC, mfma16

def f32(x): return struct.unpack("<I", struct.pack("<f", x))[0]

KV_BASE = 0
O_BASE = 8 << 20
FKV_BASE = 12 << 20
FO_BASE = 13 << 20
ST_BASE = 16 << 20
WS_BYTES = 268435456
QSCALE = 0x3e8293ee
NEGBIG = 0xf149f2ca
BIGB = 1e30
WO_LDS = 32768
CTL1 = 162816
M_O = 0
QX = 16384 + 1024
M_L = 16384
FL = 17408
F_Q, F_QACK, F_FULL, F_ACK, F_RDY, F_WO, F_R, F_PUB, F_KVL, F_O1, F_O2, F_HR, F_HD, F_M1 = 0, 16, 32, 48, 64, 80, 96, 112, 128, 144, 148, 160, 176, 192
POLL_MAX = 400000

class Opt:
    stamps = False
    touch = {-1: 1, 1: 1, 5: 1, 9: 1}
    force_slow = False
    probe = None
    out_sc1 = True
    psleep = 2
    wot = 9
    woa = {}
    pd = 10
    obits = 'sc1'
O = Opt()

def mfma32(A, d, a, b, c=None):
    cs = vr(d, 16) if c is None else (c if isinstance(c, str) else vr(c, 16))
    A(f"v_mfma_f32_32x32x16_bf16 {vr(d,16)}, {vr(a,4)}, {vr(b,4)}, {cs}")

def stamp(A, idx, wait=False):
    if O.stamps or O.probe:
        A(f"s_memrealtime s[{80+2*idx}:{81+2*idx}]")
        if wait: A("s_waitcnt lgkmcnt(0)")

def prologue(A):
    A("s_cmp_ge_u32 s2, 256")
    A("s_cbranch_scc1 L_end")
    A("s_load_dwordx8 s[4:11], s[0:1], 0")
    A("s_load_dwordx4 s[12:15], s[0:1], 32")
    stamp(A, 0)
    A("s_and_b32 s43, s2, 7")
    A("s_lshr_b32 s44, s2, 3")
    A("s_and_b32 s40, s44, 15")
    A("s_lshr_b32 s44, s44, 4")
    A("s_lshl_b32 s41, s43, 1")
    A("s_add_u32 s41, s41, s44")
    A("v_lshrrev_b32 v1, 6, v0")
    A("v_and_b32 v2, 63, v0")
    A("v_readfirstlane_b32 s42, v1")

SRDS = {"x": (16, 4, 0x400000), "w": (20, 6, 0x600000), "wo": (24, 8, 0x200000), "out": (28, 10, 0x400000), "ws": (32, 14, WS_BYTES), "dbg": (36, 12, 256)}
def srds(A, which, wait=True):
    if wait: A("s_waitcnt lgkmcnt(0)")
    for k in which:
        base, ptr, n = SRDS[k]
        A(f"s_mov_b32 s{base}, s{ptr}")
        A(f"s_mov_b32 s{base+1}, s{ptr+1}")
        A(f"s_mov_b32 s{base+2}, {n:#x}")
        A(f"s_mov_b32 s{base+3}, 0x20000")

def wo_voff(A, dst):
    A("v_lshrrev_b32 v3, 3, v2")
    A("v_and_b32 v4, 7, v2")
    A("v_and_b32 v5, 6, v3")
    A("v_xor_b32 v4, v4, v5")
    A("v_lshlrev_b32 v3, 11, v3")
    A("v_lshl_add_u32 v3, v4, 4, v3")
    A("s_lshl_b32 s44, s40, 7")
    A(f"v_add_u32 v{dst}, s44, v3")

def wo_issue(A, pieces, add_sgpr=None):
    for pc in pieces:
        if add_sgpr:
            A(f"s_add_u32 m0, s51, {WO_LDS + pc*1024}")
            A(f"s_add_u32 s48, s52, {pc*16384}")
        else:
            A(f"s_mov_b32 m0, {WO_LDS + pc*1024}")
            A(f"s_mov_b32 s48, {pc*16384}")
        A(f"buffer_load_dwordx4 v12, s[24:27], s48 offen lds")

WO_PART = {"A": list(range(88, 127)), "B": list(range(8, 48)), "C": list(range(48, 88)), "D": list(range(0, 8)) + [127]}

def read_ctl1(A, t):
    A(f"v_mov_b32 v1, {CTL1}")
    A(f"ds_read_b64 {vr(t,2)}, v1")
def take_ctl1(A, t):
    A(f"v_readfirstlane_b32 s60, v{t}")
    A(f"v_readfirstlane_b32 s61, v{t+1}")

def xloader(A):
    A("v_lshrrev_b32 v3, 3, v2")
    A("v_and_b32 v4, 7, v2")
    A("v_lshrrev_b32 v5, 1, v3")
    A("v_xor_b32 v6, v5, v4")
    A("v_xor_b32 v7, 4, v6")
    A("s_lshl_b32 s44, s40, 7")
    A("v_add_u32 v5, s44, v3")
    A("v_lshlrev_b32 v5, 11, v5")
    A("v_lshl_add_u32 v10, v6, 4, v5")
    A("v_lshl_add_u32 v11, v7, 4, v5")
    srds(A, ["x"])
    def issue(c, slot):
        for p in range(16):
            if isinstance(slot, int):
                A(f"s_mov_b32 m0, {slot + p*1024}")
                A(f"s_mov_b32 s48, {c*128 + p*16384}")
            else:
                A(f"s_add_u32 m0, {slot}, {p*1024}")
                A(f"s_add_u32 s48, s47, {p*16384}")
            A(f"buffer_load_dwordx4 v{10+p%2}, s[16:19], s48 offen lds")
    issue(0, 0); issue(1, SLOT)
    srds(A, ["wo", "out", "ws"], False)
    wo_voff(A, 12)
    A("s_waitcnt vmcnt(16)")
    A("s_barrier")
    issue(2, 2 * SLOT)
    A("s_mov_b32 s49, 0")
    A("s_mov_b32 s47, 384")
    A("s_mov_b32 s50, 13")
    A.label("L_xl_loop")
    A("s_waitcnt vmcnt(16)")
    A("s_barrier")
    issue(None, "s49")
    A("s_add_u32 s47, s47, 128")
    A(f"s_add_u32 s49, s49, {SLOT}")
    A(f"s_cmp_ge_u32 s49, {3*SLOT}")
    A("s_cselect_b32 s49, 0, s49")
    A("s_sub_u32 s50, s50, 1")
    A("s_cmp_lg_u32 s50, 0")
    A("s_cbranch_scc1 L_xl_loop")
    A("s_waitcnt vmcnt(16)")
    A("s_barrier")
    wo_issue(A, WO_PART["B"][:16])
    A("s_waitcnt vmcnt(16)")
    A("s_barrier")
    read_ctl1(A, 24)
    A("s_waitcnt lgkmcnt(0)")
    A("s_barrier")
    take_ctl1(A, 24)

def wloader(A):
    A("v_lshrrev_b32 v3, 3, v2")
    A("v_and_b32 v4, 7, v2")
    A("v_and_b32 v5, 2, v3")
    A("v_xor_b32 v6, v5, v4")
    A("v_xor_b32 v7, 4, v6")
    A("s_sub_u32 s43, s42, 5")
    A("s_lshl_b32 s44, s43, 5")
    A("v_add_u32 v5, s44, v3")
    A("v_mul_u32_u24 v5, 0x1800, v5")
    A("s_lshl_b32 s44, s41, 7")
    A("v_add_u32 v5, s44, v5")
    A("v_lshl_add_u32 v10, v6, 4, v5")
    A("v_lshl_add_u32 v11, v7, 4, v5")
    A("s_lshl_b32 s46, s43, 12")
    A("s_add_u32 s46, s46, 0x4000")
    srds(A, ["w"])
    def issue(c, slot):
        for part in range(3):
            for kg in range(4):
                if isinstance(slot, int):
                    A(f"s_add_u32 m0, s46, {slot + part*8192 + kg*1024}")
                    A(f"s_mov_b32 s48, {c*0x60000 + kg*8*6144 + part*2048}")
                else:
                    A(f"s_add_u32 m0, {slot}, {part*8192 + kg*1024}")
                    A(f"s_add_u32 s48, s47, {kg*8*6144 + part*2048}")
                A(f"buffer_load_dwordx4 v{10+kg%2}, s[20:23], s48 offen lds")
    issue(0, 0); issue(1, SLOT)
    srds(A, ["wo", "out", "ws"], False)
    wo_voff(A, 12)
    A("s_mul_i32 s51, s43, 12288")
    A("s_mul_i32 s52, s43, 196608")
    A("s_waitcnt vmcnt(12)")
    A("s_barrier")
    issue(2, 2 * SLOT)
    A("s_mov_b32 s49, s46")
    A(f"s_mov_b32 s47, {3*0x60000}")
    A("s_mov_b32 s50, 13")
    A.label("L_wl_loop")
    A("s_waitcnt vmcnt(12)")
    A("s_barrier")
    issue(None, "s49")
    A("s_add_u32 s47, s47, 0x60000")
    A(f"s_add_u32 s49, s49, {SLOT}")
    A(f"s_cmp_ge_u32 s49, {3*SLOT}")
    A("s_cselect_b32 s49, s46, s49")
    A("s_sub_u32 s50, s50, 1")
    A("s_cmp_lg_u32 s50, 0")
    A("s_cbranch_scc1 L_wl_loop")
    A("s_waitcnt vmcnt(12)")
    A("s_barrier")
    wo_issue(A, WO_PART["B"][16:28], True)
    A("s_waitcnt vmcnt(12)")
    A("s_barrier")
    read_ctl1(A, 24)
    A("s_waitcnt lgkmcnt(0)")
    A("s_barrier")
    take_ctl1(A, 24)

def touch_setup(A):
    A("s_lshl_b32 s55, s2, 3")
    A("v_and_b32 v5, 7, v2")
    A("v_add_u32 v5, s55, v5")
    A("v_lshlrev_b32 v5, 11, v5")
    A("v_lshrrev_b32 v6, 3, v2")
    A("v_lshl_add_u32 v20, v6, 7, v5")
    A("s_lshr_b32 s52, s2, 3")
    A("s_and_b32 s53, s2, 7")
    A("v_lshrrev_b32 v5, 4, v2")
    A("v_lshlrev_b32 v5, 6, v5")
    A("v_bfe_u32 v6, v2, 3, 1")
    A("v_add_u32 v5, v5, v6")
    A("s_lshl_b32 s55, s52, 1")
    A("v_add_u32 v5, s55, v5")
    A("v_mul_u32_u24 v5, 0x1800, v5")
    A("v_bfe_u32 v6, v2, 1, 2")
    A("v_lshl_add_u32 v5, v6, 11, v5")
    A("v_and_b32 v7, 1, v2")
    A("v_lshl_add_u32 v5, v7, 7, v5")
    A("s_lshl_b32 s55, s53, 8")
    A("v_add_u32 v21, s55, v5")
    A("v_mov_b32 v7, 0x7fffffff")
    A("v_cmp_eq_u32 vcc, 3, v6")
    A("s_nop 1")
    A("v_cndmask_b32 v21, v21, v7, vcc")
    A("v_cmp_le_u32 vcc, 32, v2")
    A("s_nop 1")
    A("v_cndmask_b32 v20, v20, v7, vcc")
    A("v_lshlrev_b32 v22, 7, v2")

def aux(A):
    touch_setup(A)
    wo_voff(A, 12)
    A("s_memrealtime s[60:61]")
    srds(A, ["x", "w", "wo", "out", "ws", "dbg"])
    A("s_andn2_b32 s60, s60, 15")
    A("s_or_b32 s60, s60, 16")
    A("v_mov_b32 v24, s60"); A("v_mov_b32 v25, s61"); A("v_mov_b32 v26, 0"); A("v_mov_b32 v27, 0")
    A("v_mov_b32 v8, 0")
    st = {"c": 2}
    def touch():
        c = st["c"]; st["c"] += 4
        if c > 15: return
        c = min(c, 12)
        A(f"s_mov_b32 s57, {c*128}")
        A(f"s_mov_b32 s58, {c*0x60000}")
        A("buffer_load_dword v30, v21, s[20:23], s58 offen")
        A("buffer_load_dword v31, v20, s[16:19], s57 offen")
    A("s_sleep 4")
    for i in range(O.touch.get(-1, 0)): touch()
    A("s_cmp_lg_u32 s2, 0")
    A("s_cbranch_scc1 L_nn")
    A("s_mov_b64 exec, 1")
    A("buffer_store_dwordx2 v[24:25], v8, s[36:39], 0 offen sc1")
    A("s_mov_b64 exec, -1")
    A.label("L_nn")
    pa = list(WO_PART["A"])
    for c in range(17):
        if c == 15:
            A("s_waitcnt lgkmcnt(0)")
        A("s_barrier")
        if O.stamps == 2:
            A("s_memrealtime s[76:77]")
            A("s_waitcnt lgkmcnt(0)")
            A(f"v_mov_b32 v{40+c}, s76")
        if O.touch.get(c, 0):
            A("s_sleep 6")
            for i in range(O.touch[c]): touch()
        if c == O.wot:
            A("s_lshl_b32 s57, s2, 13")
            A("buffer_load_dword v30, v22, s[24:27], s57 offen")
        if c == 5:
            A("buffer_load_dwordx2 v[24:25], v8, s[36:39], 0 offen sc1")
        if c == 8:
            A("s_mov_b32 s54, 0")
            A("s_branch L_nchk")
            A.label("L_nre")
            A("buffer_load_dwordx2 v[24:25], v8, s[36:39], 0 offen sc1")
            A.label("L_nchk")
            A("s_waitcnt vmcnt(0)")
            A("v_readfirstlane_b32 s60, v24")
            A("v_readfirstlane_b32 s61, v25")
            A("s_add_u32 s54, s54, 1")
            A(f"s_cmp_gt_u32 s54, {POLL_MAX}")
            A("s_cbranch_scc1 L_nok")
            A("s_cmp_eq_u32 s60, 0")
            A("s_cbranch_scc1 L_nre")
            A.label("L_nok")
            A(f"v_mov_b32 v5, {CTL1}")
            A("ds_write_b64 v5, v[24:25]")
        if c in O.woa:
            n = O.woa[c]
            wo_issue(A, pa[:n]); pa = pa[n:]
    O.pa_left = pa

def fl_set(A, vaddr, off, k, tmp):
    A(f"s_add_u32 s58, s60, {k}")
    A(f"v_mov_b32 v{tmp}, s58")
    A(f"ds_write_b32 v{vaddr}, v{tmp} offset:{FL + off}")

def fl_wait(A, vaddr, off, k, tmp, sleep=False):
    lp = A.newlabel("Lw")
    A(f"s_add_u32 s59, s60, {k}")
    A.label(lp)
    A(f"ds_read_b32 v{tmp}, v{vaddr} offset:{FL + off}")
    A("s_waitcnt lgkmcnt(0)")
    A(f"v_cmp_ne_u32 vcc, s59, v{tmp}")
    if sleep:
        dn = A.newlabel("Lwd")
        A(f"s_cbranch_vccz {dn}")
        A(f"s_sleep {sleep}")
        A(f"s_branch {lp}")
        A.label(dn)
    else:
        A(f"s_cbranch_vccnz {lp}")

ONES = [4, 8, 12]
OA = 16; LA = 80; PB = [96, 104]; KL = 112; QF = 144; SB = [176, 192]; R1 = 208; R2 = 112; BIAS = 240

def bias_make(A, upper):
    for r in range(16):
        ko = 8 * (r // 4) + r % 4
        c = (0.5 - ko) * BIGB
        if not upper: A(f"v_add_f32 v{BIAS+r}, {f32(c):#x}, v1")
        else: A(f"v_sub_f32 v{BIAS+r}, {f32(-c):#x}, v1")
    for r in range(16):
        A(f"v_min_f32 v{BIAS+r}, 0, v{BIAS+r}")

def tb_make(A, tmp):
    A("v_and_b32 v1, 31, v2")
    A(f"v_lshrrev_b32 v{tmp}, 5, v2")
    A(f"v_lshlrev_b32 v{tmp}, 2, v{tmp}")
    A(f"v_sub_u32 v1, v1, v{tmp}")
    A("v_cvt_f32_i32 v1, v1")
    A(f"v_mul_f32 v1, {f32(BIGB):#x}, v1")

class Tiles:
    def __init__(self, A, inited):
        self.A = A; self.inited = inited; self.n = 0
    def qk(self, t, tile, m):
        kv, qb, bias, ones = tile
        S = SB[t % 2]
        if m == 0: mfma32(self.A, S, kv, QF + 8 * qb, BIAS if bias else "0")
        else: mfma32(self.A, S, kv + 4, QF + 8 * qb + 4)
    def pv(self, t, tile, f):
        kv, qb, bias, ones = tile
        first = (f == 0 and qb not in self.inited)
        mfma32(self.A, OA + 16 * qb, kv + 8 + 4 * f, PB[t % 2] + 4 * f, "0" if first else None)
    def ls(self, t, tile, f):
        kv, qb, bias, ones = tile
        first = (f == 0 and qb not in self.inited)
        mfma16(self.A, LA + 4 * qb, ones, PB[t % 2] + 4 * f, "0" if first else None)
        if first: self.inited.add(qb)
    def run(self, tiles, hooks=None, waits=None):
        A = self.A
        hooks = hooks or {}; waits = waits or {}
        base = self.n
        if 0 in waits: A(waits[0])
        self.qk(base, tiles[0], 0); self.qk(base, tiles[0], 1)
        A("s_nop 11")
        for i, tile in enumerate(tiles):
            t = base + i
            S = SB[t % 2]; P = PB[t % 2]
            prev = tiles[i - 1] if i > 0 else None
            nxt = tiles[i + 1] if i + 1 < len(tiles) else None
            if i in hooks: hooks[i]()
            e = lambda r: A(f"v_exp_f32 v{S+r}, v{S+r}")
            c = lambda k: A(f"v_cvt_pk_bf16_f32 v{P+k}, v{S+2*k}, v{S+2*k+1}")
            e(0); e(1)
            if prev: self.pv(t - 1, prev, 1)
            for r in range(2, 6): e(r)
            if prev: self.ls(t - 1, prev, 1)
            e(6); e(7)
            if nxt:
                if (i + 1) in waits: A(waits[i + 1])
                self.qk(t + 1, nxt, 0)
            for k in range(4): c(k)
            e(8)
            if nxt: self.qk(t + 1, nxt, 1)
            for r in range(9, 13): e(r)
            self.pv(t, tile, 0)
            for r in range(13, 16): e(r)
            c(4)
            self.ls(t, tile, 0)
            for k in range(5, 8): c(k)
        A("s_nop 1")
        t = base + len(tiles) - 1
        self.pv(t, tiles[-1], 1)
        self.ls(t, tiles[-1], 1)
        self.n = base + len(tiles)

def merge(A, p, rnd):
    qf = 2 * (rnd - 1) + p; qs = 2 * (rnd - 1) + 1 - p
    T = SB[0]; X = PB[0]
    A("s_lshl_b32 s58, s44, 13")
    A(f"v_add_u32 v{X}, s58, v3")
    A("s_lshl_b32 s58, s44, 9")
    A(f"v_lshlrev_b32 v{X+1}, 2, v2")
    A(f"v_add_u32 v{X+1}, s58, v{X+1}")
    fl_wait(A, 0, (F_QACK if rnd == 1 else F_ACK) + (1 - p) * 8, 1, X + 2)
    A(f"v_and_b32 v{X+2}, 16, v2")
    A(f"v_cmp_ne_u32 vcc, 0, v{X+2}")
    A("s_nop 3")
    A(f"v_cndmask_b32 v{X+3}, v{LA+4*qs}, v{LA+4*qs+1}, vcc")
    A(f"v_cndmask_b32 v{X+4}, v{LA+4*qf}, v{LA+4*qf+1}, vcc")
    for i in range(4):
        A(f"ds_write_b128 v{X}, {vr(OA+16*qs+4*i,4)} offset:{M_O + p*4096 + i*1024}")
    A(f"ds_write_b32 v{X+1}, v{X+3} offset:{M_L + p*256}")
    fl_set(A, 0, F_FULL + p * 8, rnd, X + 5)
    fl_wait(A, 0, F_FULL + (1 - p) * 8, rnd, X + 6)
    for i in range(4):
        A(f"ds_read_b128 {vr(T+4*i,4)}, v{X} offset:{M_O + (1-p)*4096 + i*1024}")
    A(f"ds_read_b32 v{X+3}, v{X+1} offset:{M_L + (1-p)*256}")
    t = X + 6
    A(f"v_and_b32 v{t}, 15, v2")
    A(f"v_lshlrev_b32 v{t}, 4, v{t}")
    A(f"v_bfe_u32 v{t+1}, v2, 4, 1")
    A(f"v_lshl_add_u32 v{t}, v{t+1}, 10, v{t}")
    A(f"v_lshrrev_b32 v{t+1}, 5, v2")
    A(f"v_lshl_add_u32 v{t}, v{t+1}, 8, v{t}")
    A("s_waitcnt lgkmcnt(0)")
    A(f"ds_write_b32 v0, v{X+5} offset:{FL + F_ACK + p*8}")
    if rnd == 1:
        A(f"ds_write_b32 v0, v{X+5} offset:{FL + F_M1 + p*8}")
    Lr = X + 4
    A(f"v_add_f32 v{Lr}, v{Lr}, v{X+3}")
    Ob = OA + 16 * qf
    A(f"v_rcp_f32 v{X+3}, v{Lr}")
    for i in range(0, 16, 2):
        A(f"v_pk_add_f32 {vr(Ob+i,2)}, {vr(Ob+i,2)}, {vr(T+i,2)}")
    for i in range(0, 16, 2):
        A(f"v_pk_mul_f32 {vr(T+i,2)}, {vr(Ob+i,2)}, {vr(X+2,2)} op_sel:[0,1] op_sel_hi:[1,1]")
    for i in range(8):
        A(f"v_cvt_pk_bf16_f32 v{T+16+i}, v{T+2*i}, v{T+2*i+1}")
    A(f"s_add_u32 s58, s66, {qf*65536}")
    A(f"buffer_store_dwordx4 {vr(T+16,4)}, v{t}, s[32:35], s58 offen sc1")
    A(f"buffer_store_dwordx4 {vr(T+20,4)}, v{t}, s[32:35], s58 offen offset:512 sc1")
    A(f"v_add_f32 v{T}, |v{Ob}|, |v{Ob+1}|")
    A(f"v_add_f32 v{T+1}, |v{Ob+2}|, |v{Ob+3}|")
    for i in range(4, 16, 2):
        A(f"v_add_f32 v{T}, v{T}, |v{Ob+i}|")
        A(f"v_add_f32 v{T+1}, v{T+1}, |v{Ob+i+1}|")
    A(f"v_add_f32 v{T}, v{T}, v{T+1}")
    A(f"v_cmp_le_f32 vcc, {f32(2.0**-30):#x}, v{Lr}")
    A(f"s_mov_b64 s[56:57], vcc")
    A(f"v_cmp_ge_f32 vcc, {f32(2.0**30):#x}, v{Lr}")
    A("s_and_b64 s[56:57], s[56:57], vcc")
    A(f"v_cmp_gt_f32 vcc, {f32(2.0**100):#x}, v{T}")
    A("s_and_b64 s[56:57], s[56:57], vcc")
    A("s_cmp_eq_u64 s[56:57], -1")
    if O.force_slow:
        A("s_cmp_eq_u32 s40, 99")
    A(f"s_cselect_b32 s58, 0, {1 << (rnd-1)}")
    A("s_or_b32 s63, s63, s58")

def o_store(A, src, qf, t):
    A(f"v_and_b32 v{t}, 15, v2")
    A(f"v_lshlrev_b32 v{t}, 4, v{t}")
    A(f"v_bfe_u32 v{t+1}, v2, 4, 1")
    A(f"v_lshl_add_u32 v{t}, v{t+1}, 10, v{t}")
    A(f"v_lshrrev_b32 v{t+1}, 5, v2")
    A(f"v_lshl_add_u32 v{t}, v{t+1}, 8, v{t}")
    A(f"s_add_u32 s58, s66, {qf*65536}")
    A(f"buffer_store_dwordx4 {vr(src,4)}, v{t}, s[32:35], s58 offen sc1")
    A(f"buffer_store_dwordx4 {vr(src+4,4)}, v{t}, s[32:35], s58 offen offset:512 sc1")

def g_flag(A, soff_expr, bit, tmp):
    skip = A.newlabel("Lskf")
    if bit:
        A(f"s_bitcmp1_b32 s63, {bit-1}")
        A(f"s_cbranch_scc1 {skip}")
    A(f"v_mov_b32 v{tmp}, s60"); A(f"v_mov_b32 v{tmp+1}, s61"); A(f"v_mov_b32 v{tmp+2}, 0")
    A(soff_expr)
    A("s_waitcnt vmcnt(0)")
    A("s_mov_b64 exec, 1")
    A(f"buffer_store_dwordx2 {vr(tmp,2)}, v{tmp+2}, s[32:35], s58 offen sc1")
    A("s_mov_b64 exec, -1")
    A.label(skip)

def try_flag(A, soff_expr, donebit, skipbit, tmp, block, lds_off=None):
    skip = A.newlabel("Ltf")
    A(f"s_bitcmp1_b32 s70, {donebit}")
    A(f"s_cbranch_scc1 {skip}")
    if skipbit:
        A(f"s_bitcmp1_b32 s63, {skipbit-1}")
        A(f"s_cbranch_scc1 {skip}")
    if not block:
        A("s_getreg_b32 s58, hwreg(HW_REG_IB_STS, 0, 4)")
        A("s_cmp_lg_u32 s58, 0")
        A(f"s_cbranch_scc1 {skip}")
    A(f"v_mov_b32 v{tmp}, s60"); A(f"v_mov_b32 v{tmp+1}, s61"); A(f"v_mov_b32 v{tmp+2}, 0")
    A(soff_expr)
    A("s_waitcnt vmcnt(0)")
    A("s_mov_b64 exec, 1")
    A(f"buffer_store_dwordx2 {vr(tmp,2)}, v{tmp+2}, s[32:35], s58 offen sc1")
    A("s_mov_b64 exec, -1")
    A(f"s_bitset1_b32 s70, {donebit}")
    if lds_off is not None:
        fl_set(A, 0, lds_off, 1, tmp + 3)
    A.label(skip)

def attn_slow(A, QFr, s_qb, s_kvb, OUT):
    KF, VF, S, PF, Oo = 32, 40, 48, 64, 80
    M, Lr, T, D = 96, 97, 98, 100
    A("v_and_b32 v4, 31, v2")
    A("v_lshrrev_b32 v5, 5, v2")
    A("v_lshlrev_b32 v5, 2, v5")
    A("v_sub_u32 v4, v4, v5")
    A(f"s_sub_u32 s52, {s_qb}, 8")
    A("s_max_i32 s52, s52, 0")
    A(f"v_mov_b32 v{M}, {NEGBIG:#x}")
    A(f"v_mov_b32 v{T+1}, {NEGBIG:#x}")
    A(f"v_mov_b32 v{Lr}, 0")
    for i in range(16): A(f"v_mov_b32 v{Oo+i}, 0")
    A("s_movk_i32 s57, 256")
    for ps in range(2):
        A("s_mov_b32 s53, s52")
        lp = A.newlabel("Lat")
        A.label(lp)
        A("s_lshl_b32 s54, s53, 12")
        A(f"s_add_u32 s54, s54, {s_kvb}")
        A(f"buffer_load_dwordx4 {vr(KF,4)}, v3, s[32:35], s54 offen sc1")
        A(f"buffer_load_dwordx4 {vr(KF+4,4)}, v3, s[32:35], s54 offen offset:1024 sc1")
        if ps:
            A(f"buffer_load_dwordx4 {vr(VF,4)}, v3, s[32:35], s54 offen offset:2048 sc1")
            A(f"buffer_load_dwordx4 {vr(VF+4,4)}, v3, s[32:35], s54 offen offset:3072 sc1")
        A(f"s_sub_u32 s55, {s_qb}, s53")
        A("s_lshl_b32 s55, s55, 5")
        A(f"v_add_u32 v{D}, s55, v4")
        A("s_waitcnt vmcnt(0)")
        mfma32(A, S, KF, QFr, "0")
        mfma32(A, S, KF + 4, QFr + 4)
        A("s_nop 15")
        for r in range(16):
            ko = 8 * (r // 4) + r % 4
            A(f"v_subrev_u32 v{T}, {ko}, v{D}")
            A(f"v_cmp_gt_u32 vcc, s57, v{T}")
            A("s_nop 1")
            A(f"v_cndmask_b32 v{S+r}, v{T+1}, v{S+r}, vcc")
            if ps == 0:
                A(f"v_max_f32 v{M}, v{M}, v{S+r}")
            else:
                A(f"v_sub_f32 v{S+r}, v{S+r}, v{M}")
                A(f"v_exp_f32 v{S+r}, v{S+r}")
                A("s_nop 0")
                A(f"v_add_f32 v{Lr}, v{Lr}, v{S+r}")
        if ps:
            for i in range(8):
                A(f"v_cvt_pk_bf16_f32 v{PF+i}, v{S+2*i}, v{S+2*i+1}")
            A("s_nop 1")
            mfma32(A, Oo, VF, PF)
            mfma32(A, Oo, VF + 4, PF + 4)
        A("s_add_u32 s53, s53, 1")
        A(f"s_cmp_le_u32 s53, {s_qb}")
        A(f"s_cbranch_scc1 {lp}")
        R = M if ps == 0 else Lr
        A(f"v_mov_b32 v{T}, v{R}")
        A("s_nop 1")
        A(f"v_permlane32_swap_b32 v{T}, v{R}")
        A("s_nop 1")
        if ps == 0: A(f"v_max_f32 v{M}, v{M}, v{T}")
        else: A(f"v_add_f32 v{Lr}, v{Lr}, v{T}")
    A(f"v_rcp_f32 v{Lr}, v{Lr}")
    A("s_nop 15")
    for i in range(16): A(f"v_mul_f32 v{Oo+i}, v{Oo+i}, v{Lr}")
    for i in range(8): A(f"v_cvt_pk_bf16_f32 v{OUT+i}, v{Oo+2*i}, v{Oo+2*i+1}")

def acc(w, tt): return ACC + 4 * (w * 4 + tt)

def compute_pre(A):
    A("s_lshl_b32 s62, s41, 1")
    A("s_add_u32 s62, s62, s44")
    A("s_lshl_b32 s47, s40, 1")
    A("s_add_u32 s47, s47, s45")
    A("s_lshl_b32 s48, s62, 5")
    A("s_add_u32 s48, s48, s47")
    A("s_lshl_b32 s65, s48, 7")
    A(f"s_add_u32 s65, s65, {FKV_BASE}")
    A("s_lshl_b32 s64, s48, 13")
    A("s_add_u32 s49, s64, 4096")
    A("s_lshl_b32 s66, s40, 7")
    A("s_add_u32 s66, s66, s62")
    A("s_lshl_b32 s67, s66, 7")
    A(f"s_add_u32 s67, s67, {FO_BASE}")
    A("s_lshl_b32 s66, s66, 11")
    A(f"s_add_u32 s66, s66, {O_BASE}")
    A("s_mov_b32 s63, 0")
    A("s_mov_b32 s70, 0")
    A("v_lshlrev_b32 v3, 4, v2")
    A("v_lshrrev_b32 v1, 4, v2")
    A("v_xor_b32 v1, v1, v2")
    A("v_and_b32 v1, 1, v1")
    A("v_add_u32 v1, -1, v1")
    A("v_and_b32 v1, 0x3f803f80, v1")
    for i in range(4): A(f"v_mov_b32 v{ONES[0]+i}, v1")
    A("s_cmp_ge_u32 s40, 1")
    A("s_cselect_b32 s56, -1, 0")
    A("s_cselect_b32 s52, 0, 0x40000000")
    A("s_cmp_ge_u32 s40, 2")
    A("s_cselect_b32 s57, -1, 0")
    A("s_cselect_b32 s53, 0, 0x40000000")
    for i in range(4): A(f"v_and_b32 v{ONES[1]+i}, s56, v1")
    for i in range(4): A(f"v_and_b32 v{ONES[2]+i}, s57, v1")
    A("s_add_u32 s68, s52, s64"); A("s_sub_u32 s68, s68, 0x4000")
    A("s_add_u32 s69, s53, s64"); A("s_sub_u32 s69, s69, 0x8000")
    tb_make(A, 0)
    bias_make(A, False)
    A("s_lshl_b32 s58, s44, 2")
    A("v_mov_b32 v0, s58")

def transition_kv(A):
    pairs16 = []; pairs32 = []
    for T in range(2):
        for f in range(2):
            b = KL + 16 * T + 4 * f
            for j in range(2):
                A(f"v_cvt_pk_bf16_f32 v{b+j}, v{acc(2+f,2*T)+2*j}, v{acc(2+f,2*T)+2*j+1}")
                A(f"v_cvt_pk_bf16_f32 v{b+2+j}, v{acc(2+f,2*T+1)+2*j}, v{acc(2+f,2*T+1)+2*j+1}")
                pairs16.append((b + j, b + 2 + j))
    A("s_nop 1")
    for a, b in pairs16: A(f"v_permlane16_swap_b32 v{a}, v{b}")
    for i in (0, 1, 4, 5):
        A(f"buffer_store_dwordx4 {vr(KL+4*i,4)}, v3, s[32:35], s{64 if i < 4 else 49} offen offset:{1024*(i%4)} sc1")
    pairs16 = []
    for T in range(2):
        for f in range(2):
            b = KL + 16 * T + 8 + 4 * f
            tt = 2 * T + f
            for j in range(2):
                A(f"v_cvt_pk_bf16_f32 v{b+j}, v{acc(4,tt)+2*j}, v{acc(4,tt)+2*j+1}")
                A(f"v_cvt_pk_bf16_f32 v{b+2+j}, v{acc(5,tt)+2*j}, v{acc(5,tt)+2*j+1}")
                pairs16.append((b + j, b + 2 + j))
    A("s_nop 1")
    for a, b in pairs16: A(f"v_permlane16_swap_b32 v{a}, v{b}")
    for a, b in pairs16: A(f"v_permlane32_swap_b32 v{a}, v{b}")
    for i in (2, 3, 6, 7):
        A(f"buffer_store_dwordx4 {vr(KL+4*i,4)}, v3, s[32:35], s{64 if i < 4 else 49} offen offset:{1024*(i%4)} sc1")

FINQ = {0: (2, 3, 1, 0), 1: (3, 2, 0, 1)}
def phase2(A, p):
    A(f"s_mov_b32 s56, {QSCALE:#x}")
    A(f"s_mov_b32 s57, {QSCALE:#x}")
    for i in range(16):
        A(f"v_pk_mul_f32 {vr(ACC+2*i,2)}, {vr(ACC+2*i,2)}, s[56:57]")
    pairs = []
    for T in range(2):
        for f in range(2):
            b = QF + 8 * (2 * p + T) + 4 * f
            for j in range(2):
                A(f"v_cvt_pk_bf16_f32 v{b+j}, v{acc(f,2*T)+2*j}, v{acc(f,2*T)+2*j+1}")
                A(f"v_cvt_pk_bf16_f32 v{b+2+j}, v{acc(f,2*T+1)+2*j}, v{acc(f,2*T+1)+2*j+1}")
                pairs.append((b + j, b + 2 + j))
    A("s_lshl_b32 s58, s44, 13")
    A(f"v_add_u32 v{R1}, s58, v3")
    for a, b in pairs: A(f"v_permlane16_swap_b32 v{a}, v{b}")
    for k in range(4):
        A(f"ds_write_b128 v{R1}, {vr(QF+16*p+4*k,4)} offset:{M_O + p*4096 + k*1024}")
    fl_set(A, 0, F_Q + p * 8, 1, R1 + 1)
    stamp(A, 2)
    T = Tiles(A, set())
    K0, K1 = KL, KL + 16
    o0 = ONES[0]
    def h_q():
        fl_wait(A, 0, F_Q + (1 - p) * 8, 1, R1 + 2)
        for k in range(4):
            A(f"ds_read_b128 {vr(QF+16*(1-p)+4*k,4)}, v{R1} offset:{M_O + (1-p)*4096 + k*1024}")
    def kvflag(block):
        try_flag(A, "s_mov_b32 s58, s65", 0, 0, R1 + 4, block, F_PUB + p * 8)
    def h_qack():
        A("s_waitcnt lgkmcnt(0)")
        A(f"ds_write_b32 v0, v{R1+1} offset:{FL + F_QACK + p*8}")
        kvflag(False)
    if p == 0:
        local = [(K0, 0, True, o0), (K0, 1, False, o0), (K1, 1, True, o0), (K0, 2, False, o0), (K1, 2, False, o0), (K0, 3, False, o0), (K1, 3, False, o0)]
    else:
        local = [(K0, 2, True, o0), (K0, 3, False, o0), (K1, 3, True, o0)]
    hk = {1: h_q, 2: h_qack}
    for i in range(3, len(local)): hk[i] = lambda: kvflag(False)
    T.run(local, hooks=hk)
    stamp(A, 3)
    kvflag(False)
    tb_make(A, R1)
    bias_make(A, True)
    kvflag(True)
    XAD, LAD, OAD, TMP = 4, 5, 6, 7
    A("s_lshl_b32 s58, s44, 13")
    A(f"v_add_u32 v{XAD}, s58, v3")
    A("s_lshl_b32 s58, s44, 9")
    A(f"v_lshlrev_b32 v{LAD}, 2, v2")
    A(f"v_add_u32 v{LAD}, s58, v{LAD}")
    A(f"v_and_b32 v{OAD}, 15, v2")
    A(f"v_lshlrev_b32 v{OAD}, 4, v{OAD}")
    A(f"v_bfe_u32 v{TMP}, v2, 4, 1")
    A(f"v_lshl_add_u32 v{OAD}, v{TMP}, 10, v{OAD}")
    A(f"v_cmp_ne_u32 s[72:73], 0, v{TMP}")
    A(f"v_lshrrev_b32 v{TMP}, 5, v2")
    A(f"v_lshl_add_u32 v{OAD}, v{TMP}, 8, v{OAD}")
    fl_wait(A, 0, F_QACK + (1 - p) * 8, 1, R1)
    A(f"v_mov_b32 v{R1+1}, 0")
    fl_wait(A, R1 + 1, F_RDY, 1, R1)
    stamp(A, 4)
    a0, a1, b0, b1 = R1, R1 + 16, R2, R2 + 16
    o1, o2 = ONES[1], ONES[2]
    def ld(base, sb, off):
        if off: A(f"s_add_u32 s58, {sb}, {off}")
        for i in range(4):
            A(f"buffer_load_dwordx4 {vr(base+4*i,4)}, v3, s[32:35], {'s58' if off else sb} offen offset:{1024*i} sc1")
    def send(q, rnd):
        def f():
            A(f"v_cndmask_b32 v{TMP}, v{LA+4*q}, v{LA+4*q+1}, s[72:73]")
            for i in range(4):
                A(f"ds_write_b128 v{XAD}, {vr(OA+16*q+4*i,4)} offset:{M_O + p*4096 + i*1024}")
            A(f"ds_write_b32 v{LAD}, v{TMP} offset:{M_L + p*256}")
            fl_set(A, 0, F_FULL + p * 8, rnd, 1)
        return f
    def peek(off):
        def f():
            A(f"ds_read_b32 v1, v0 offset:{FL + off}")
        return f
    def check(off, k):
        ok = A.newlabel("Lck")
        A(f"s_add_u32 s59, s60, {k}")
        A("s_waitcnt lgkmcnt(0)")
        A("v_cmp_ne_u32 vcc, s59, v1")
        A(f"s_cbranch_vccz {ok}")
        fl_wait(A, 0, off, k, 1)
        A.label(ok)
    def recv(qs, rnd):
        def f():
            check(F_FULL + (1 - p) * 8, rnd)
            for i in range(4):
                A(f"ds_read_b128 {vr(OA+16*qs+4*i,4)}, v{XAD} offset:{M_O + (1-p)*4096 + i*1024}")
            A(f"ds_read_b32 v{LA+4*qs}, v{LAD} offset:{M_L + (1-p)*256}")
        return f
    def fin(qf, qs, rnd):
        def f():
            Tn = OA + 16 * qs; Ob = OA + 16 * qf; Lr = LA + 4 * qs + 1; Rc = LA + 4 * qs + 2
            A(f"v_cndmask_b32 v{Lr}, v{LA+4*qf}, v{LA+4*qf+1}, s[72:73]")
            A(f"s_add_u32 s58, s60, {rnd}")
            A(f"v_mov_b32 v1, s58")
            A("s_waitcnt lgkmcnt(0)")
            A(f"ds_write_b32 v0, v1 offset:{FL + F_ACK + p*8}")
            if rnd == 1:
                A(f"ds_write_b32 v0, v1 offset:{FL + F_M1 + p*8}")
            A(f"v_add_f32 v{Lr}, v{Lr}, v{LA+4*qs}")
            A(f"v_rcp_f32 v{Rc}, v{Lr}")
            for i in range(0, 16, 2):
                A(f"v_pk_add_f32 {vr(Ob+i,2)}, {vr(Ob+i,2)}, {vr(Tn+i,2)}")
            for i in range(0, 16, 2):
                A(f"v_pk_mul_f32 {vr(Tn+i,2)}, {vr(Ob+i,2)}, {vr(Rc,2)} op_sel_hi:[1,0]")
            for i in range(8):
                A(f"v_cvt_pk_bf16_f32 v{Tn+i}, v{Tn+2*i}, v{Tn+2*i+1}")
            A(f"s_add_u32 s58, s66, {qf*65536}")
            A(f"buffer_store_dwordx4 {vr(Tn,4)}, v{OAD}, s[32:35], s58 offen sc1")
            A(f"buffer_store_dwordx4 {vr(Tn+4,4)}, v{OAD}, s[32:35], s58 offen offset:512 sc1")
            C = Tn + 8
            A(f"v_add_f32 v{C}, |v{Ob}|, |v{Ob+1}|")
            A(f"v_add_f32 v{C+1}, |v{Ob+2}|, |v{Ob+3}|")
            for i in range(4, 16, 2):
                A(f"v_add_f32 v{C}, v{C}, |v{Ob+i}|")
                A(f"v_add_f32 v{C+1}, v{C+1}, |v{Ob+i+1}|")
            A(f"v_add_f32 v{C}, v{C}, v{C+1}")
            A(f"v_cmp_le_f32 vcc, {f32(2.0**-30):#x}, v{Lr}")
            A(f"s_mov_b64 s[56:57], vcc")
            A(f"v_cmp_ge_f32 vcc, {f32(2.0**30):#x}, v{Lr}")
            A("s_and_b64 s[56:57], s[56:57], vcc")
            A(f"v_cmp_gt_f32 vcc, {f32(2.0**100):#x}, v{C}")
            A("s_and_b64 s[56:57], s[56:57], vcc")
            A("s_cmp_eq_u64 s[56:57], -1")
            if O.force_slow:
                A("s_cmp_eq_u32 s40, 99")
            A(f"s_cselect_b32 s58, 0, {1 << (rnd-1)}")
            A("s_or_b32 s63, s63, s58")
        return f
    qf1, qs1, qf2, qs2 = FINQ[p]
    def of1(block):
        try_flag(A, f"s_add_u32 s58, s67, {qf1*4096}", 1, 1, OA + 16 * qf1, block)
    def h_kvl():
        fl_set(A, 0, F_KVL + p * 8, 1, TMP)
    def seq(*fs):
        def f():
            for g in fs: g()
        return f
    if p == 0:
        e = b0
        ld(a0, "s68", 0); ld(a1, "s68", 4096); ld(e, "s69", 8192 + 4096); ld(b1, "s69", 4096)
        tiles = [(a0, 3, False, o1), (a1, 3, False, o1), (e, 3, True, o2),
                 (e, 2, False, o2), (a0, 2, False, o1), (a1, 2, False, o1),
                 (a0, 0, False, o1), (a1, 0, False, o1), (b1, 0, False, o2), (b0, 0, True, o2),
                 (a0, 1, False, o1), (a1, 1, False, o1), (b1, 1, True, o2)]
        w = {0: "s_waitcnt vmcnt(12)", 1: "s_waitcnt vmcnt(8)", 2: "s_waitcnt vmcnt(4)", 4: "s_waitcnt vmcnt(0)", 9: "s_waitcnt vmcnt(2)"}
        hk = {4: seq(send(3, 1), h_kvl), 5: seq(lambda: ld(b0, "s69", 0), peek(F_FULL + 8)), 6: recv(3, 1), 7: fin(2, 3, 1),
              9: lambda: of1(False), 10: seq(lambda: of1(False), peek(F_ACK + 8)),
              11: seq(lambda: check(F_ACK + 8, 1), send(0, 2), lambda: of1(False)), 12: seq(lambda: of1(False), peek(F_FULL + 8))}
    else:
        ld(a0, "s68", 0); ld(a1, "s68", 4096); ld(b0, "s69", 0); ld(b1, "s69", 4096)
        tiles = [(a0, 2, False, o1), (a1, 2, False, o1), (b0, 2, True, o2),
                 (a0, 3, False, o1), (a1, 3, False, o1),
                 (a0, 1, False, o1), (a1, 1, False, o1), (b0, 1, False, o2), (b1, 1, False, o2),
                 (a0, 0, False, o1), (a1, 0, False, o1), (b0, 0, False, o2), (b1, 0, False, o2)]
        w = {0: "s_waitcnt vmcnt(12)", 1: "s_waitcnt vmcnt(8)", 2: "s_waitcnt vmcnt(4)", 4: "s_waitcnt vmcnt(0)"}
        hk = {4: seq(send(2, 1), h_kvl), 5: peek(F_FULL), 6: recv(2, 1), 7: fin(3, 2, 1),
              9: seq(lambda: of1(False), peek(F_ACK)), 10: seq(lambda: check(F_ACK, 1), send(1, 2), lambda: of1(False)),
              11: lambda: of1(False), 12: seq(lambda: of1(False), peek(F_FULL))}
    T.run(tiles, waits=w, hooks=hk)
    stamp(A, 5)
    recv(qs2, 2)()
    of1(True)
    A("s_nop 4")
    fin(qf2, qs2, 2)()
    stamp(A, 6)
    try_flag(A, f"s_add_u32 s58, s67, {qf2*4096}", 2, 2, OA + 16 * qf2, True)
    for rnd in (1, 2):
        qf = (qf1, qf2)[rnd - 1]
        skip = A.newlabel("Lnf")
        A(f"s_bitcmp1_b32 s63, {rnd-1}")
        A(f"s_cbranch_scc0 {skip}")
        A("s_lshl_b32 s68, s40, 2")
        A(f"s_add_u32 s68, s68, {qf}")
        A("s_lshl_b32 s69, s62, 18")
        attn_slow(A, QF + 8 * qf, "s68", "s69", 24)
        o_store(A, 24, qf, 102)
        g_flag(A, f"s_add_u32 s58, s67, {qf*4096}", 0, 16)
        A.label(skip)
    stamp(A, 7)

def wo_addr(A, kh_sgpr):
    A("v_lshrrev_b32 v5, 4, v2")
    A("v_bfe_u32 v6, v2, 2, 2")
    A("v_lshrrev_b32 v7, 1, v5")
    A("v_lshlrev_b32 v7, 4, v7")
    A("v_and_b32 v8, 1, v5")
    A("v_lshl_add_u32 v7, v8, 2, v7")
    A("v_add_u32 v7, v7, v6")
    A("v_bfe_u32 v8, v7, 1, 2")
    A("v_lshlrev_b32 v7, 7, v7")
    A("v_lshl_add_u32 v7, v8, 5, v7")
    A("v_and_b32 v6, 3, v2")
    A("v_lshl_add_u32 v7, v6, 3, v7")
    if kh_sgpr:
        A(f"s_lshl_b32 s51, {kh_sgpr}, 16")
        A(f"s_add_u32 s51, s51, {WO_LDS}")
        A("v_add_u32 v10, s51, v7")
    else:
        A(f"v_add_u32 v10, {WO_LDS}, v7")
    for ct in range(1, 4):
        A(f"v_xor_b32 v{10+ct}, {32*ct}, v10")

def wo_ready_wait(A, tmp):
    A(f"v_and_b32 v{tmp}, 3, v2")
    A(f"v_lshlrev_b32 v{tmp}, 2, v{tmp}")
    fl_wait(A, tmp, F_WO, 1, tmp + 1, sleep=1)

def poll_o(A, lab, voff, soff):
    A("s_mov_b32 s54, 0")
    A.label(lab)
    A(f"buffer_load_dwordx2 v[6:7], v{voff}, s[32:35], {soff} offen sc1")
    A("s_add_u32 s54, s54, 1")
    A(f"s_cmp_gt_u32 s54, {POLL_MAX}")
    A(f"s_cbranch_scc1 {lab}g")
    A("s_waitcnt vmcnt(0)")
    A("v_cmp_ne_u64 vcc, s[60:61], v[6:7]")
    A(f"s_cbranch_vccnz {lab}")
    A.label(lab + "g")
    A("s_waitcnt vmcnt(0)")

def out_addr(A, row_sgpr):
    A("v_and_b32 v5, 15, v2")
    A(f"v_add_u32 v5, {row_sgpr}, v5")
    A("v_lshlrev_b32 v5, 11, v5")
    A("v_bfe_u32 v6, v2, 4, 1")
    A("v_lshl_add_u32 v5, v6, 5, v5")
    A("v_lshrrev_b32 v6, 5, v2")
    A("v_lshl_add_u32 v5, v6, 4, v5")
    A("s_lshl_b32 s50, s40, 7")
    A("v_add_u32 v5, s50, v5")

def out_store(A, D, P, nh):
    bits = "sc1" if O.out_sc1 else ""
    for hf in range(nh):
        for cp in range(2):
            b = P + 8 * hf + 4 * cp
            for j in range(2):
                a0 = D + 4 * (hf * 4 + 2 * cp) + 2 * j; a1 = D + 4 * (hf * 4 + 2 * cp + 1) + 2 * j
                A(f"v_cvt_pk_bf16_f32 v{b+j}, v{a0}, v{a0+1}")
                A(f"v_cvt_pk_bf16_f32 v{b+2+j}, v{a1}, v{a1+1}")
    A("s_nop 1")
    for q in range(2 * nh):
        A(f"v_permlane16_swap_b32 v{P+4*q}, v{P+4*q+2}")
        A(f"v_permlane16_swap_b32 v{P+4*q+1}, v{P+4*q+3}")
    A("s_mov_b32 s51, 0x8000")
    for hf in range(nh):
        for cp in range(2):
            A(f"buffer_store_dwordx4 {vr(P+8*hf+4*cp,4)}, v5, s[28:31], {'s51' if hf else '0'} offen offset:{64*cp} {bits}")

def phase3_body(A, tag, rt0, oflag, gate, f_r, done_flag):
    D = 16; WF = [48, 64]; OF = 96
    A("s_lshl_b32 s48, s41, 2")
    A("s_add_u32 s48, s48, s44")
    if rt0: A(f"s_add_u32 s48, s48, {rt0}")
    A("s_lshl_b32 s49, s48, 5")
    A("s_lshl_b32 s50, s45, 4")
    A("s_add_u32 s49, s49, s50")
    A("s_lshl_b32 s49, s49, 11")
    A(f"s_add_u32 s49, s49, {O_BASE}")
    wo_addr(A, "s45")
    A("s_lshl_b32 s52, s48, 5")
    A("s_lshl_b32 s53, s45, 4")
    A("s_add_u32 s52, s52, s53")
    out_addr(A, "s52")
    A("s_lshl_b32 s58, s44, 13")
    A("v_add_u32 v4, s58, v3")
    wo_ready_wait(A, 14)
    def wreads(s, st):
        f = WF[st]; r = []
        for ct in range(4):
            r.append(f"ds_read_b64_tr_b16 {vr(f+4*ct,2)}, v{10+ct} offset:{s*4096}")
            r.append(f"ds_read_b64_tr_b16 {vr(f+4*ct+2,2)}, v{10+ct} offset:{s*4096+1024}")
        return r
    for r in wreads(0, 0): A(r)
    A("v_mov_b32 v14, 0")
    fl_wait(A, 14, oflag, 1, 15, sleep=1)
    stamp(A, 8, True)
    nl = [0]
    def oload():
        k = nl[0]
        if k >= 32: return
        A(f"buffer_load_dwordx4 {vr(OF+4*k,4)}, v3, s[32:35], s49 offen offset:{(k%4)*1024} {O.obits}")
        if k % 4 == 3: A("s_add_u32 s49, s49, 4096")
        nl[0] += 1
    for k in range(O.pd): oload()
    for s in range(16):
        st = s % 2
        R = wreads(s + 1, 1 - st) if s < 15 else []
        issued = 0
        for i in range(8):
            ct, hf = i // 2, i % 2
            w = []
            if i < 2: w.append(f"vmcnt({nl[0] - 1 - (2*s+hf)})")
            if hf == 0: w.append(f"lgkmcnt({6 - 2*ct + issued})")
            if w: A("s_waitcnt " + " ".join(w))
            mfma16(A, D + 4 * (hf * 4 + ct), WF[st] + 4 * ct, OF + 4 * (2 * s + hf), "0" if s == 0 else None)
            if R: A(R[i]); issued += 1
            if i in (2, 5): oload()
    stamp(A, 9)
    A("v_and_b32 v14, 1, v2")
    A("v_lshl_add_u32 v14, v14, 3, v0")
    fl_wait(A, 14, gate[0], gate[1], 15)
    A("s_cmp_eq_u32 s45, 1")
    A(f"s_cbranch_scc1 L_{tag}_p1")
    for p in range(2):
        if p: A.label(f"L_{tag}_p1")
        for i in range(4):
            A(f"ds_write_b128 v4, {vr(D+16*(1-p)+4*i,4)} offset:{M_O + p*4096 + 1024*i}")
        fl_set(A, 0, f_r + p * 8, 1, 14)
        fl_wait(A, 0, f_r + (1 - p) * 8, 1, 15)
        for i in range(4):
            A(f"ds_read_b128 {vr(OF+4*i,4)}, v4 offset:{M_O + (1-p)*4096 + 1024*i}")
        A("s_waitcnt lgkmcnt(0)")
        if done_flag is not None:
            A(f"ds_write_b32 v0, v14 offset:{FL + done_flag + p*8}")
        for i in range(0, 16, 2):
            A(f"v_pk_add_f32 {vr(D+16*p+i,2)}, {vr(D+16*p+i,2)}, {vr(OF+i,2)}")
        out_store(A, D + 16 * p, 64, 1)
        A("s_branch L_fin")

def poll_g(A, lab, voff, soff):
    A("s_mov_b32 s54, 0")
    A.label(lab)
    A(f"buffer_load_dwordx2 v[6:7], v{voff}, s[32:35], {soff} offen sc1")
    A("s_add_u32 s54, s54, 1")
    A(f"s_cmp_gt_u32 s54, {POLL_MAX}")
    A(f"s_cbranch_scc1 {lab}g")
    A("s_waitcnt vmcnt(0)")
    A("v_cmp_ne_u64 vcc, s[60:61], v[6:7]")
    A(f"s_cbranch_vccz {lab}g")
    if O.psleep: A(f"s_sleep {O.psleep}")
    A(f"s_branch {lab}")
    A.label(lab + "g")

def phase3_compute(A):
    A("s_cmp_lg_u32 s42, 0")
    A("s_cbranch_scc1 L_np2")
    A("v_lshlrev_b32 v4, 7, v2")
    A("s_lshl_b32 s50, s41, 14")
    A(f"s_add_u32 s50, s50, {FO_BASE}")
    poll_g(A, "L_po2", 4, "s50")
    A("v_mov_b32 v14, 0")
    fl_set(A, 14, F_O2, 1, 15)
    A.label("L_np2")
    phase3_body(A, "c3", 0, F_O2, (F_HD, 1), F_R, None)

def helper_tail(A):
    A("s_sub_u32 s43, s42, 4")
    A("s_and_b32 s44, s43, 1")
    A("s_lshr_b32 s45, s43, 1")
    A("v_lshlrev_b32 v3, 4, v2")
    A("v_and_b32 v14, 3, v2")
    A("v_lshlrev_b32 v14, 2, v14")
    A("s_cmp_lg_u32 s42, 7")
    A("s_cbranch_scc1 L_nkp")
    A("s_lshl_b32 s46, s41, 6")
    A("s_lshl_b32 s47, s40, 1")
    A("s_add_u32 s46, s46, s47")
    A("s_lshl_b32 s46, s46, 7")
    A(f"s_add_u32 s46, s46, {FKV_BASE - 512}")
    A("v_bfe_u32 v4, v2, 2, 1")
    A("v_xor_b32 v4, 1, v4")
    A("s_cmp_ge_u32 s40, 2")
    A("s_cselect_b32 s47, 0, 1")
    A("v_or_b32 v4, s47, v4")
    A("v_lshlrev_b32 v4, 1, v4")
    A("v_and_b32 v5, 1, v2")
    A("v_add_u32 v4, v4, v5")
    A("v_bfe_u32 v5, v2, 1, 1")
    A("v_lshl_add_u32 v4, v5, 5, v4")
    A("v_lshlrev_b32 v4, 7, v4")
    A("s_cmp_eq_u32 s40, 0")
    A("s_cbranch_scc1 L_pkg")
    fl_wait(A, 14, F_PUB, 1, 15, sleep=1)
    poll_g(A, "L_pk", 4, "s46")
    A("v_mov_b32 v16, 0")
    fl_set(A, 16, F_RDY, 1, 15)
    A.label("L_nkp")
    fl_wait(A, 14, F_KVL, 1, 15, sleep=1)
    A("s_mul_i32 s51, s43, 10240")
    A("s_mul_i32 s52, s43, 163840")
    wo_issue(A, list(range(48, 58)), True)
    A("s_lshl_b32 s51, s43, 11")
    A("s_lshl_b32 s52, s43, 15")
    wo_issue(A, [0, 1], True)
    left = O.pa_left + [127]
    per = (len(left) + 3) // 4
    first = 128 - 4 * per
    A(f"s_mul_i32 s51, s43, {per*1024}")
    A(f"s_mul_i32 s52, s43, {per*16384}")
    wo_issue(A, list(range(first, first + per)), True)
    A("s_lshl_b32 s58, s43, 2")
    A("v_mov_b32 v16, s58")
    A("s_waitcnt vmcnt(0)")
    fl_set(A, 16, F_WO, 1, 15)
    A("s_lshl_b32 s58, s44, 2")
    A("v_mov_b32 v0, s58")
    A("s_cmp_lg_u32 s42, 7")
    A("s_cbranch_scc1 L_np1")
    fl_wait(A, 14, F_M1, 1, 15, sleep=1)
    A("v_lshlrev_b32 v4, 7, v2")
    A("s_lshl_b32 s50, s41, 14")
    A(f"s_add_u32 s50, s50, {FO_BASE + 8192}")
    poll_g(A, "L_po1", 4, "s50")
    A("v_mov_b32 v14, 0")
    fl_set(A, 14, F_O1, 1, 15)
    A.label("L_np1")
    phase3_body(A, "h3", 2, F_O1, (F_ACK, 2), F_HR, F_HD)

def compute_p1(A):
    A("s_mov_b32 s47, 0")
    A("s_mov_b32 s50, 16")
    lp = A.newlabel("Lmm")
    A.label(lp)
    A("s_waitcnt lgkmcnt(0)")
    p1.step(A, 1, p1.reads(0, 0), 4, extra={3: ["s_barrier"]})
    upd = [f"s_add_u32 s47, s47, {SLOT}", f"s_cmp_ge_u32 s47, {3*SLOT}", "s_cselect_b32 s47, 0, s47"]
    ex = {18: upd}
    for i in range(4):
        ex[19 + i] = [f"v_add_u32 v{p1.XA+i}, s47, v{p1.XA0+i}"]
    ex[23] = ["s_sub_u32 s50, s50, 1", "s_cmp_lg_u32 s50, 0"]
    p1.step(A, 0, p1.reads(1, 1), 0, extra=ex, pre_done=0)
    A(f"s_cbranch_scc1 {lp}")
    A("s_waitcnt lgkmcnt(0)")
    read_ctl1(A, 200)
    order = list(range(8, 24)) + list(range(0, 8))
    for n, i in enumerate(order):
        p1.mf(A, i, 1)
        if n == 5:
            A("s_waitcnt lgkmcnt(0)")
            A("s_barrier")
            take_ctl1(A, 200)

def main(out):
    A = Asm()
    name = "standalone__sliding_block__prompt_kernel"
    A.raw(HEADER_COMMENT.rstrip())
    A.raw(f"; @launch grid=(256,1,1) block=(512,1,1) lds=163840")
    A.raw('.amdgcn_target "amdgcn-amd-amdhsa--gfx950"')
    A.raw(".text")
    kernel_begin(A, name)
    prologue(A)
    A("s_cmp_eq_u32 s42, 4")
    A("s_cbranch_scc1 L_xl")
    A("s_cmp_eq_u32 s42, 7")
    A("s_cbranch_scc1 L_aux")
    A("s_cmp_ge_u32 s42, 5")
    A("s_cbranch_scc1 L_wl")
    p1.compute_setup(A)
    compute_pre(A)
    srds(A, ["out", "ws"])
    compute_p1(A)
    stamp(A, 1)
    transition_kv(A)
    A("s_cmp_eq_u32 s45, 1")
    A("s_cbranch_scc1 L_p1")
    phase2(A, 0)
    A("s_branch L_p3")
    A.label("L_p1")
    phase2(A, 1)
    A.label("L_p3")
    phase3_compute(A)
    A.label("L_xl")
    xloader(A)
    A("s_branch L_ht")
    A.label("L_wl")
    wloader(A)
    A("s_branch L_ht")
    A.label("L_aux")
    aux(A)
    if O.stamps == 2:
        A("s_lshl_b32 s46, s2, 7")
        A(f"s_add_u32 s46, s46, {ST_BASE + 0x40000}")
        A("v_mov_b32 v3, 0")
        A("v_mov_b32 v39, s80")
        for i in range(18):
            A(f"buffer_store_dword v{39+i}, v3, s[32:35], s46 offen offset:{4*i}")
    A.label("L_ht")
    helper_tail(A)
    A.label("L_fin")
    if O.probe:
        i, j = O.probe
        A("s_cmp_ge_u32 s42, 4")
        A("s_cbranch_scc1 L_end")
        A("s_waitcnt vmcnt(0)")
        stamp(A, 10, True)
        A(f"s_sub_u32 s46, s{80+2*j}, s{80+2*i}")
        A("s_add_u32 s46, s46, s100")
        A.label("L_spin")
        A("s_memrealtime s[48:49]")
        A("s_waitcnt lgkmcnt(0)")
        A("s_sub_u32 s50, s48, s46")
        A("s_cmp_lt_i32 s50, 0")
        A("s_cbranch_scc1 L_spin")
    if O.stamps:
        A("s_waitcnt vmcnt(0)")
        stamp(A, 10, True)
        A("s_lshl_b32 s46, s2, 3")
        A("s_add_u32 s46, s46, s42")
        A("s_lshl_b32 s46, s46, 6")
        A(f"s_add_u32 s46, s46, {ST_BASE}")
        A("v_mov_b32 v3, 0")
        A("s_mov_b64 exec, 1")
        for i in range(11):
            A(f"v_mov_b32 v4, s{80+2*i}")
            A(f"buffer_store_dword v4, v3, s[32:35], s46 offen offset:{4*i}")
    A.label("L_end")
    A("s_endpgm")
    A.raw('.section .rodata,"a"')
    kernel_desc(A, name, 256, 102, 256)
    open(out, "w").write(A.text())

if __name__ == "__main__":
    for a in sys.argv[2:]:
        k, v = a.split("=")
        setattr(O, k, eval(v))
    main(sys.argv[1])
```

```python
import sys, struct
from asmlib import *
import p1
from p1 import SLOT, ACC, mfma16

def f32(x): return struct.unpack("<I", struct.pack("<f", x))[0]

KV_BASE = 0
O_BASE = 8 << 20
FKV_BASE = 12 << 20
FO_BASE = 13 << 20
ST_BASE = 16 << 20
WS_BYTES = 268435456
QSCALE = 0x3e8293ee
NEGBIG = 0xf149f2ca
BIGB = 1e30
WO_LDS = 32768
CTL1 = 162816
M_O = 0
QX = 16384 + 1024
M_L = 16384
FL = 17408
F_Q, F_QACK, F_FULL, F_ACK, F_RDY, F_WO, F_R, F_PUB, F_KVL, F_O1, F_O2, F_HR, F_HD, F_M1 = 0, 16, 32, 48, 64, 80, 96, 112, 128, 144, 148, 160, 176, 192
POLL_MAX = 400000

class Opt:
    stamps = False
    touch = {-1: 1, 1: 1, 5: 1, 9: 1}
    force_slow = False
    probe = None
    out_sc1 = True
    psleep = 2
    fsh = 5
    fpre = True
    slotst = None
    lflag = 24
    hprio = 2
    wo_early = False
    nv = 4
    wot = 9
    woa = {12:8,13:8,14:12,15:11}
    pd = 10
    obits = 'sc1'
O = Opt()

def mfma32(A, d, a, b, c=None):
    cs = vr(d, 16) if c is None else (c if isinstance(c, str) else vr(c, 16))
    A(f"v_mfma_f32_32x32x16_bf16 {vr(d,16)}, {vr(a,4)}, {vr(b,4)}, {cs}")

def stamp(A, idx, wait=False, force=False):
    if O.slotst and not force and idx not in (0, 10): return
    if O.stamps or O.probe:
        A(f"s_memrealtime s[{80+2*idx}:{81+2*idx}]")
        if wait: A("s_waitcnt lgkmcnt(0)")

def prologue(A):
    A("s_cmp_ge_u32 s2, 256")
    A("s_cbranch_scc1 L_end")
    A("s_load_dwordx8 s[4:11], s[0:1], 0")
    A("s_load_dwordx4 s[12:15], s[0:1], 32")
    stamp(A, 0)
    A("s_and_b32 s43, s2, 7")
    A("s_lshr_b32 s44, s2, 3")
    A("s_and_b32 s40, s44, 15")
    A("s_lshr_b32 s44, s44, 4")
    A("s_lshl_b32 s41, s43, 1")
    A("s_add_u32 s41, s41, s44")
    A("v_lshrrev_b32 v1, 6, v0")
    A("v_and_b32 v2, 63, v0")
    A("v_readfirstlane_b32 s42, v1")

SRDS = {"x": (16, 4, 0x400000), "w": (20, 6, 0x600000), "wo": (24, 8, 0x200000), "out": (28, 10, 0x400000), "ws": (32, 14, WS_BYTES), "dbg": (36, 12, 256)}
def srds(A, which, wait=True):
    if wait: A("s_waitcnt lgkmcnt(0)")
    for k in which:
        base, ptr, n = SRDS[k]
        A(f"s_mov_b32 s{base}, s{ptr}")
        A(f"s_mov_b32 s{base+1}, s{ptr+1}")
        A(f"s_mov_b32 s{base+2}, {n:#x}")
        A(f"s_mov_b32 s{base+3}, 0x20000")

def wo_voff(A, dst):
    A("v_lshrrev_b32 v3, 3, v2")
    A("v_and_b32 v4, 7, v2")
    A("v_and_b32 v5, 6, v3")
    A("v_xor_b32 v4, v4, v5")
    A("v_lshlrev_b32 v3, 11, v3")
    A("v_lshl_add_u32 v3, v4, 4, v3")
    A("s_lshl_b32 s44, s40, 7")
    A(f"v_add_u32 v{dst}, s44, v3")

def wo_issue(A, pieces, add_sgpr=None):
    for pc in pieces:
        if add_sgpr:
            A(f"s_add_u32 m0, s51, {WO_LDS + pc*1024}")
            A(f"s_add_u32 s48, s52, {pc*16384}")
        else:
            A(f"s_mov_b32 m0, {WO_LDS + pc*1024}")
            A(f"s_mov_b32 s48, {pc*16384}")
        A(f"buffer_load_dwordx4 v12, s[24:27], s48 offen lds")

WO_PART = {"A": list(range(88, 127)), "B": list(range(8, 48)), "C": list(range(48, 88)), "D": list(range(0, 8)) + [127]}

def read_ctl1(A, t):
    A(f"v_mov_b32 v1, {CTL1}")
    A(f"ds_read_b64 {vr(t,2)}, v1")
def take_ctl1(A, t):
    A(f"v_readfirstlane_b32 s60, v{t}")
    A(f"v_readfirstlane_b32 s61, v{t+1}")

def xloader(A):
    A("v_lshrrev_b32 v3, 3, v2")
    A("v_and_b32 v4, 7, v2")
    A("v_lshrrev_b32 v5, 1, v3")
    A("v_xor_b32 v6, v5, v4")
    A("v_xor_b32 v7, 4, v6")
    A("s_lshl_b32 s44, s40, 7")
    A("v_add_u32 v5, s44, v3")
    A("v_lshlrev_b32 v5, 11, v5")
    A("v_lshl_add_u32 v10, v6, 4, v5")
    A("v_lshl_add_u32 v11, v7, 4, v5")
    srds(A, ["x"])
    def issue(c, slot):
        for p in range(16):
            if isinstance(slot, int):
                A(f"s_mov_b32 m0, {slot + p*1024}")
                A(f"s_mov_b32 s48, {c*128 + p*16384}")
            else:
                A(f"s_add_u32 m0, {slot}, {p*1024}")
                A(f"s_add_u32 s48, s47, {p*16384}")
            A(f"buffer_load_dwordx4 v{10+p%2}, s[16:19], s48 offen lds")
    issue(0, 0); issue(1, SLOT)
    srds(A, ["wo", "out", "ws"], False)
    wo_voff(A, 12)
    A("s_waitcnt vmcnt(16)")
    A("s_barrier")
    issue(2, 2 * SLOT)
    A("s_mov_b32 s49, 0")
    A("s_mov_b32 s47, 384")
    A("s_mov_b32 s50, 13")
    A.label("L_xl_loop")
    A("s_waitcnt vmcnt(16)")
    A("s_barrier")
    issue(None, "s49")
    A("s_add_u32 s47, s47, 128")
    A(f"s_add_u32 s49, s49, {SLOT}")
    A(f"s_cmp_ge_u32 s49, {3*SLOT}")
    A("s_cselect_b32 s49, 0, s49")
    A("s_sub_u32 s50, s50, 1")
    A("s_cmp_lg_u32 s50, 0")
    A("s_cbranch_scc1 L_xl_loop")
    A("s_waitcnt vmcnt(16)")
    A("s_barrier")
    A("s_waitcnt vmcnt(0)")
    A("s_barrier")
    read_ctl1(A, 24)
    A("s_waitcnt lgkmcnt(0)")
    A("s_barrier")
    take_ctl1(A, 24)

def wloader(A):
    A("v_lshrrev_b32 v3, 3, v2")
    A("v_and_b32 v4, 7, v2")
    A("v_and_b32 v5, 2, v3")
    A("v_xor_b32 v6, v5, v4")
    A("v_xor_b32 v7, 4, v6")
    A("s_sub_u32 s43, s42, 5")
    A("s_lshl_b32 s44, s43, 5")
    A("v_add_u32 v5, s44, v3")
    A("v_mul_u32_u24 v5, 0x1800, v5")
    A("s_lshl_b32 s44, s41, 7")
    A("v_add_u32 v5, s44, v5")
    A("v_lshl_add_u32 v10, v6, 4, v5")
    A("v_lshl_add_u32 v11, v7, 4, v5")
    A("s_lshl_b32 s46, s43, 12")
    A("s_add_u32 s46, s46, 0x4000")
    srds(A, ["w"])
    def issue(c, slot):
        for part in range(3):
            for kg in range(4):
                if isinstance(slot, int):
                    A(f"s_add_u32 m0, s46, {slot + part*8192 + kg*1024}")
                    A(f"s_mov_b32 s48, {c*0x60000 + kg*8*6144 + part*2048}")
                else:
                    A(f"s_add_u32 m0, {slot}, {part*8192 + kg*1024}")
                    A(f"s_add_u32 s48, s47, {kg*8*6144 + part*2048}")
                A(f"buffer_load_dwordx4 v{10+kg%2}, s[20:23], s48 offen lds")
    issue(0, 0); issue(1, SLOT)
    srds(A, ["wo", "out", "ws"], False)
    wo_voff(A, 12)
    A("s_mul_i32 s51, s43, 12288")
    A("s_mul_i32 s52, s43, 196608")
    A("s_waitcnt vmcnt(12)")
    A("s_barrier")
    issue(2, 2 * SLOT)
    A("s_mov_b32 s49, s46")
    A(f"s_mov_b32 s47, {3*0x60000}")
    A("s_mov_b32 s50, 13")
    A.label("L_wl_loop")
    A("s_waitcnt vmcnt(12)")
    A("s_barrier")
    issue(None, "s49")
    A("s_add_u32 s47, s47, 0x60000")
    A(f"s_add_u32 s49, s49, {SLOT}")
    A(f"s_cmp_ge_u32 s49, {3*SLOT}")
    A("s_cselect_b32 s49, s46, s49")
    A("s_sub_u32 s50, s50, 1")
    A("s_cmp_lg_u32 s50, 0")
    A("s_cbranch_scc1 L_wl_loop")
    A("s_waitcnt vmcnt(12)")
    A("s_barrier")
    A("s_waitcnt vmcnt(0)")
    A("s_barrier")
    read_ctl1(A, 24)
    A("s_waitcnt lgkmcnt(0)")
    A("s_barrier")
    take_ctl1(A, 24)

def touch_setup(A):
    A("s_lshl_b32 s55, s2, 3")
    A("v_and_b32 v5, 7, v2")
    A("v_add_u32 v5, s55, v5")
    A("v_lshlrev_b32 v5, 11, v5")
    A("v_lshrrev_b32 v6, 3, v2")
    A("v_lshl_add_u32 v20, v6, 7, v5")
    A("s_lshr_b32 s52, s2, 3")
    A("s_and_b32 s53, s2, 7")
    A("v_lshrrev_b32 v5, 4, v2")
    A("v_lshlrev_b32 v5, 6, v5")
    A("v_bfe_u32 v6, v2, 3, 1")
    A("v_add_u32 v5, v5, v6")
    A("s_lshl_b32 s55, s52, 1")
    A("v_add_u32 v5, s55, v5")
    A("v_mul_u32_u24 v5, 0x1800, v5")
    A("v_bfe_u32 v6, v2, 1, 2")
    A("v_lshl_add_u32 v5, v6, 11, v5")
    A("v_and_b32 v7, 1, v2")
    A("v_lshl_add_u32 v5, v7, 7, v5")
    A("s_lshl_b32 s55, s53, 8")
    A("v_add_u32 v21, s55, v5")
    A("v_mov_b32 v7, 0x7fffffff")
    A("v_cmp_eq_u32 vcc, 3, v6")
    A("s_nop 1")
    A("v_cndmask_b32 v21, v21, v7, vcc")
    A("v_cmp_le_u32 vcc, 32, v2")
    A("s_nop 1")
    A("v_cndmask_b32 v20, v20, v7, vcc")
    A("v_lshlrev_b32 v22, 7, v2")

def aux(A):
    touch_setup(A)
    wo_voff(A, 12)
    A("s_memrealtime s[60:61]")
    srds(A, ["x", "w", "wo", "out", "ws", "dbg"])
    A("s_andn2_b32 s60, s60, 15")
    A("s_or_b32 s60, s60, 16")
    A("v_mov_b32 v24, s60"); A("v_mov_b32 v25, s61"); A("v_mov_b32 v26, 0"); A("v_mov_b32 v27, 0")
    A("v_mov_b32 v8, 0")
    st = {"c": 2}
    def touch():
        c = st["c"]; st["c"] += 4
        if c > 15: return
        c = min(c, 12)
        A(f"s_mov_b32 s57, {c*128}")
        A(f"s_mov_b32 s58, {c*0x60000}")
        A("buffer_load_dword v30, v21, s[20:23], s58 offen")
        A("buffer_load_dword v31, v20, s[16:19], s57 offen")
    A("s_sleep 4")
    for i in range(O.touch.get(-1, 0)): touch()
    A("s_cmp_lg_u32 s2, 0")
    A("s_cbranch_scc1 L_nn")
    A("s_mov_b64 exec, 1")
    A("buffer_store_dwordx2 v[24:25], v8, s[36:39], 0 offen sc1")
    A("s_mov_b64 exec, -1")
    A.label("L_nn")
    pa = list(WO_PART["A"])
    for c in range(17):
        if c == 15:
            A("s_waitcnt lgkmcnt(0)")
        A("s_barrier")
        if O.stamps == 2:
            A("s_memrealtime s[76:77]")
            A("s_waitcnt lgkmcnt(0)")
            A(f"v_mov_b32 v{40+c}, s76")
        if O.touch.get(c, 0):
            A("s_sleep 6")
            for i in range(O.touch[c]): touch()
        if c == O.wot:
            A("s_lshl_b32 s57, s2, 13")
            A("buffer_load_dword v30, v22, s[24:27], s57 offen")
            if O.fpre:
                A(f"v_lshlrev_b32 v5, {O.fsh+1}, v2")
                A(f"s_lshl_b32 s57, s41, {7+O.fsh}")
                A(f"s_add_u32 s57, s57, {FO_BASE}")
                A("buffer_load_dword v30, v5, s[32:35], s57 offen")
                if O.fsh == 7: A("buffer_load_dword v30, v5, s[32:35], s57 offen offset:128")
            if O.lflag:
                A("v_and_b32 v5, 1, v2")
                A("v_bfe_u32 v6, v2, 1, 1")
                A("v_lshl_add_u32 v5, v6, 5, v5")
                A("v_lshlrev_b32 v5, 7, v5")
                A("s_lshl_b32 s57, s41, 6")
                A("s_lshl_b32 s58, s40, 1")
                A("s_add_u32 s57, s57, s58")
                A("s_lshl_b32 s57, s57, 7")
                A(f"s_add_u32 s57, s57, {FKV_BASE + 0x40000}")
                A("buffer_load_dword v30, v5, s[32:35], s57 offen")
        if c == 5:
            A("buffer_load_dwordx2 v[24:25], v8, s[36:39], 0 offen sc1")
        if c == 8:
            A("s_mov_b32 s54, 0")
            A("s_branch L_nchk")
            A.label("L_nre")
            A("buffer_load_dwordx2 v[24:25], v8, s[36:39], 0 offen sc1")
            A.label("L_nchk")
            A("s_waitcnt vmcnt(0)")
            A("v_readfirstlane_b32 s60, v24")
            A("v_readfirstlane_b32 s61, v25")
            A("s_add_u32 s54, s54, 1")
            A(f"s_cmp_gt_u32 s54, {POLL_MAX}")
            A("s_cbranch_scc1 L_nok")
            A("s_cmp_eq_u32 s60, 0")
            A("s_cbranch_scc1 L_nre")
            A.label("L_nok")
            A(f"v_mov_b32 v5, {CTL1}")
            A("ds_write_b64 v5, v[24:25]")
        if c in O.woa:
            n = O.woa[c]
            wo_issue(A, pa[:n]); pa = pa[n:]
    O.pa_left = pa

def fl_set(A, vaddr, off, k, tmp):
    A(f"s_add_u32 s58, s60, {k}")
    A(f"v_mov_b32 v{tmp}, s58")
    A(f"ds_write_b32 v{vaddr}, v{tmp} offset:{FL + off}")

def fl_wait(A, vaddr, off, k, tmp, sleep=False):
    lp = A.newlabel("Lw")
    A(f"s_add_u32 s59, s60, {k}")
    A.label(lp)
    A(f"ds_read_b32 v{tmp}, v{vaddr} offset:{FL + off}")
    A("s_waitcnt lgkmcnt(0)")
    A(f"v_cmp_ne_u32 vcc, s59, v{tmp}")
    if sleep:
        dn = A.newlabel("Lwd")
        A(f"s_cbranch_vccz {dn}")
        A(f"s_sleep {sleep}")
        A(f"s_branch {lp}")
        A.label(dn)
    else:
        A(f"s_cbranch_vccnz {lp}")

ONES = [4, 8, 12]
OA = 16; LA = 80; PB = [96, 104]; KL = 208; QF = 144; SB = [176, 192]; R1 = 112; R2 = 208; BIAS = 240

def bias_make(A, upper):
    for r in range(16):
        ko = 8 * (r // 4) + r % 4
        c = (0.5 - ko) * BIGB
        if not upper: A(f"v_add_f32 v{BIAS+r}, {f32(c):#x}, v1")
        else: A(f"v_sub_f32 v{BIAS+r}, {f32(-c):#x}, v1")
    for r in range(16):
        A(f"v_min_f32 v{BIAS+r}, 0, v{BIAS+r}")

def tb_make(A, tmp):
    A("v_and_b32 v1, 31, v2")
    A(f"v_lshrrev_b32 v{tmp}, 5, v2")
    A(f"v_lshlrev_b32 v{tmp}, 2, v{tmp}")
    A(f"v_sub_u32 v1, v1, v{tmp}")
    A("v_cvt_f32_i32 v1, v1")
    A(f"v_mul_f32 v1, {f32(BIGB):#x}, v1")

class Tiles:
    def __init__(self, A, inited):
        self.A = A; self.inited = inited; self.n = 0
    def qk(self, t, tile, m):
        kv, qb, bias, ones = tile
        S = SB[t % 2]
        if m == 0: mfma32(self.A, S, kv, QF + 8 * qb, BIAS if bias else "0")
        else: mfma32(self.A, S, kv + 4, QF + 8 * qb + 4)
    def pv(self, t, tile, f):
        kv, qb, bias, ones = tile
        first = (f == 0 and qb not in self.inited)
        mfma32(self.A, OA + 16 * qb, kv + 8 + 4 * f, PB[t % 2] + 4 * f, "0" if first else None)
    def ls(self, t, tile, f):
        kv, qb, bias, ones = tile
        first = (f == 0 and qb not in self.inited)
        mfma16(self.A, LA + 4 * qb, ones, PB[t % 2] + 4 * f, "0" if first else None)
        if first: self.inited.add(qb)
    def run(self, tiles, hooks=None, waits=None):
        A = self.A
        hooks = hooks or {}; waits = waits or {}
        base = self.n
        if 0 in waits: A(waits[0])
        self.qk(base, tiles[0], 0); self.qk(base, tiles[0], 1)
        A("s_nop 11")
        for i, tile in enumerate(tiles):
            t = base + i
            S = SB[t % 2]; P = PB[t % 2]
            prev = tiles[i - 1] if i > 0 else None
            nxt = tiles[i + 1] if i + 1 < len(tiles) else None
            if O.slotst and t in O.slotst: stamp(A, 1 + O.slotst.index(t), force=True)
            if i in hooks: hooks[i]()
            e = lambda r: A(f"v_exp_f32 v{S+r}, v{S+r}")
            c = lambda k: A(f"v_cvt_pk_bf16_f32 v{P+k}, v{S+2*k}, v{S+2*k+1}")
            e(0); e(1)
            if prev: self.pv(t - 1, prev, 1)
            for r in range(2, 6): e(r)
            if prev: self.ls(t - 1, prev, 1)
            e(6); e(7)
            if nxt:
                if (i + 1) in waits: A(waits[i + 1])
                self.qk(t + 1, nxt, 0)
            for k in range(4): c(k)
            e(8)
            if nxt: self.qk(t + 1, nxt, 1)
            for r in range(9, 13): e(r)
            self.pv(t, tile, 0)
            for r in range(13, 16): e(r)
            c(4)
            self.ls(t, tile, 0)
            for k in range(5, 8): c(k)
        A("s_nop 1")
        t = base + len(tiles) - 1
        self.pv(t, tiles[-1], 1)
        self.ls(t, tiles[-1], 1)
        self.n = base + len(tiles)

def merge(A, p, rnd):
    qf = 2 * (rnd - 1) + p; qs = 2 * (rnd - 1) + 1 - p
    T = SB[0]; X = PB[0]
    A("s_lshl_b32 s58, s44, 13")
    A(f"v_add_u32 v{X}, s58, v3")
    A("s_lshl_b32 s58, s44, 9")
    A(f"v_lshlrev_b32 v{X+1}, 2, v2")
    A(f"v_add_u32 v{X+1}, s58, v{X+1}")
    fl_wait(A, 0, (F_QACK if rnd == 1 else F_ACK) + (1 - p) * 8, 1, X + 2)
    A(f"v_and_b32 v{X+2}, 16, v2")
    A(f"v_cmp_ne_u32 vcc, 0, v{X+2}")
    A("s_nop 3")
    A(f"v_cndmask_b32 v{X+3}, v{LA+4*qs}, v{LA+4*qs+1}, vcc")
    A(f"v_cndmask_b32 v{X+4}, v{LA+4*qf}, v{LA+4*qf+1}, vcc")
    for i in range(4):
        A(f"ds_write_b128 v{X}, {vr(OA+16*qs+4*i,4)} offset:{M_O + p*4096 + i*1024}")
    A(f"ds_write_b32 v{X+1}, v{X+3} offset:{M_L + p*256}")
    fl_set(A, 0, F_FULL + p * 8, rnd, X + 5)
    fl_wait(A, 0, F_FULL + (1 - p) * 8, rnd, X + 6)
    for i in range(4):
        A(f"ds_read_b128 {vr(T+4*i,4)}, v{X} offset:{M_O + (1-p)*4096 + i*1024}")
    A(f"ds_read_b32 v{X+3}, v{X+1} offset:{M_L + (1-p)*256}")
    t = X + 6
    A(f"v_and_b32 v{t}, 15, v2")
    A(f"v_lshlrev_b32 v{t}, 4, v{t}")
    A(f"v_bfe_u32 v{t+1}, v2, 4, 1")
    A(f"v_lshl_add_u32 v{t}, v{t+1}, 10, v{t}")
    A(f"v_lshrrev_b32 v{t+1}, 5, v2")
    A(f"v_lshl_add_u32 v{t}, v{t+1}, 8, v{t}")
    A("s_waitcnt lgkmcnt(0)")
    A(f"ds_write_b32 v0, v{X+5} offset:{FL + F_ACK + p*8}")
    if rnd == 1:
        A(f"ds_write_b32 v0, v{X+5} offset:{FL + F_M1 + p*8}")
    Lr = X + 4
    A(f"v_add_f32 v{Lr}, v{Lr}, v{X+3}")
    Ob = OA + 16 * qf
    A(f"v_rcp_f32 v{X+3}, v{Lr}")
    for i in range(0, 16, 2):
        A(f"v_pk_add_f32 {vr(Ob+i,2)}, {vr(Ob+i,2)}, {vr(T+i,2)}")
    for i in range(0, 16, 2):
        A(f"v_pk_mul_f32 {vr(T+i,2)}, {vr(Ob+i,2)}, {vr(X+2,2)} op_sel:[0,1] op_sel_hi:[1,1]")
    for i in range(8):
        A(f"v_cvt_pk_bf16_f32 v{T+16+i}, v{T+2*i}, v{T+2*i+1}")
    A(f"s_add_u32 s58, s66, {qf*65536}")
    A(f"buffer_store_dwordx4 {vr(T+16,4)}, v{t}, s[32:35], s58 offen sc1")
    A(f"buffer_store_dwordx4 {vr(T+20,4)}, v{t}, s[32:35], s58 offen offset:512 sc1")
    A(f"v_add_f32 v{T}, |v{Ob}|, |v{Ob+1}|")
    A(f"v_add_f32 v{T+1}, |v{Ob+2}|, |v{Ob+3}|")
    for i in range(4, 16, 2):
        A(f"v_add_f32 v{T}, v{T}, |v{Ob+i}|")
        A(f"v_add_f32 v{T+1}, v{T+1}, |v{Ob+i+1}|")
    A(f"v_add_f32 v{T}, v{T}, v{T+1}")
    A(f"v_cmp_le_f32 vcc, {f32(2.0**-30):#x}, v{Lr}")
    A(f"s_mov_b64 s[56:57], vcc")
    A(f"v_cmp_ge_f32 vcc, {f32(2.0**30):#x}, v{Lr}")
    A("s_and_b64 s[56:57], s[56:57], vcc")
    A(f"v_cmp_gt_f32 vcc, {f32(2.0**100):#x}, v{T}")
    A("s_and_b64 s[56:57], s[56:57], vcc")
    A("s_cmp_eq_u64 s[56:57], -1")
    if O.force_slow:
        A("s_cmp_eq_u32 s40, 99")
    A(f"s_cselect_b32 s58, 0, {1 << (rnd-1)}")
    A("s_or_b32 s63, s63, s58")

def o_store(A, src, qf, t):
    A(f"v_and_b32 v{t}, 15, v2")
    A(f"v_lshlrev_b32 v{t}, 4, v{t}")
    A(f"v_bfe_u32 v{t+1}, v2, 4, 1")
    A(f"v_lshl_add_u32 v{t}, v{t+1}, 10, v{t}")
    A(f"v_lshrrev_b32 v{t+1}, 5, v2")
    A(f"v_lshl_add_u32 v{t}, v{t+1}, 8, v{t}")
    A(f"s_add_u32 s58, s66, {qf*65536}")
    A(f"buffer_store_dwordx4 {vr(src,4)}, v{t}, s[32:35], s58 offen sc1")
    A(f"buffer_store_dwordx4 {vr(src+4,4)}, v{t}, s[32:35], s58 offen offset:512 sc1")

def g_flag(A, soff_expr, bit, tmp):
    skip = A.newlabel("Lskf")
    if bit:
        A(f"s_bitcmp1_b32 s63, {bit-1}")
        A(f"s_cbranch_scc1 {skip}")
    A(f"v_mov_b32 v{tmp}, s60"); A(f"v_mov_b32 v{tmp+1}, s61"); A(f"v_mov_b32 v{tmp+2}, 0")
    A(soff_expr)
    A("s_waitcnt vmcnt(0)")
    A("s_mov_b64 exec, 1")
    A(f"buffer_store_dwordx2 {vr(tmp,2)}, v{tmp+2}, s[32:35], s58 offen sc1")
    A("s_mov_b64 exec, -1")
    A.label(skip)

OOL = []
def try_flag(A, soff_expr, inh, tmp, block, local=False):
    go = A.newlabel("Ltg"); back = A.newlabel("Ltb")
    if block:
        A(f"s_cmp_eq_u32 {inh}, 0")
    else:
        A("s_getreg_b32 s58, hwreg(HW_REG_IB_STS, 0, 4)")
        A(f"s_or_b32 s58, s58, {inh}")
        A("s_cmp_eq_u32 s58, 0")
    A(f"s_cbranch_scc1 {go}")
    A.label(back)
    def ool(B):
        B.label(go)
        B(f"v_mov_b32 v{tmp}, s60"); B(f"v_mov_b32 v{tmp+1}, s61"); B(f"v_mov_b32 v{tmp+2}, 0")
        B(soff_expr)
        B("s_waitcnt vmcnt(0)")
        B("s_mov_b64 exec, 1")
        if local and O.lflag:
            B("s_add_u32 s59, s58, 0x40000")
            B(f"buffer_store_dwordx2 {vr(tmp,2)}, v{tmp+2}, s[32:35], s59 offen")
        B(f"buffer_store_dwordx2 {vr(tmp,2)}, v{tmp+2}, s[32:35], s58 offen sc1")
        B("s_mov_b64 exec, -1")
        B(f"s_mov_b32 {inh}, 1")
        if local: B("s_mov_b32 s76, 0")
        B(f"s_branch {back}")
    OOL.append(ool)

def attn_slow(A, QFr, s_qb, s_kvb, OUT):
    KF, VF, S, PF, Oo = 32, 40, 48, 64, 80
    M, Lr, T, D = 96, 97, 98, 100
    A("v_and_b32 v4, 31, v2")
    A("v_lshrrev_b32 v5, 5, v2")
    A("v_lshlrev_b32 v5, 2, v5")
    A("v_sub_u32 v4, v4, v5")
    A(f"s_sub_u32 s52, {s_qb}, 8")
    A("s_max_i32 s52, s52, 0")
    A(f"v_mov_b32 v{M}, {NEGBIG:#x}")
    A(f"v_mov_b32 v{T+1}, {NEGBIG:#x}")
    A(f"v_mov_b32 v{Lr}, 0")
    for i in range(16): A(f"v_mov_b32 v{Oo+i}, 0")
    A("s_movk_i32 s57, 256")
    for ps in range(2):
        A("s_mov_b32 s53, s52")
        lp = A.newlabel("Lat")
        A.label(lp)
        A("s_lshl_b32 s54, s53, 12")
        A(f"s_add_u32 s54, s54, {s_kvb}")
        A(f"buffer_load_dwordx4 {vr(KF,4)}, v3, s[32:35], s54 offen sc1")
        A(f"buffer_load_dwordx4 {vr(KF+4,4)}, v3, s[32:35], s54 offen offset:1024 sc1")
        if ps:
            A(f"buffer_load_dwordx4 {vr(VF,4)}, v3, s[32:35], s54 offen offset:2048 sc1")
            A(f"buffer_load_dwordx4 {vr(VF+4,4)}, v3, s[32:35], s54 offen offset:3072 sc1")
        A(f"s_sub_u32 s55, {s_qb}, s53")
        A("s_lshl_b32 s55, s55, 5")
        A(f"v_add_u32 v{D}, s55, v4")
        A("s_waitcnt vmcnt(0)")
        mfma32(A, S, KF, QFr, "0")
        mfma32(A, S, KF + 4, QFr + 4)
        A("s_nop 15")
        for r in range(16):
            ko = 8 * (r // 4) + r % 4
            A(f"v_subrev_u32 v{T}, {ko}, v{D}")
            A(f"v_cmp_gt_u32 vcc, s57, v{T}")
            A("s_nop 1")
            A(f"v_cndmask_b32 v{S+r}, v{T+1}, v{S+r}, vcc")
            if ps == 0:
                A(f"v_max_f32 v{M}, v{M}, v{S+r}")
            else:
                A(f"v_sub_f32 v{S+r}, v{S+r}, v{M}")
                A(f"v_exp_f32 v{S+r}, v{S+r}")
                A("s_nop 0")
                A(f"v_add_f32 v{Lr}, v{Lr}, v{S+r}")
        if ps:
            for i in range(8):
                A(f"v_cvt_pk_bf16_f32 v{PF+i}, v{S+2*i}, v{S+2*i+1}")
            A("s_nop 1")
            mfma32(A, Oo, VF, PF)
            mfma32(A, Oo, VF + 4, PF + 4)
        A("s_add_u32 s53, s53, 1")
        A(f"s_cmp_le_u32 s53, {s_qb}")
        A(f"s_cbranch_scc1 {lp}")
        R = M if ps == 0 else Lr
        A(f"v_mov_b32 v{T}, v{R}")
        A("s_nop 1")
        A(f"v_permlane32_swap_b32 v{T}, v{R}")
        A("s_nop 1")
        if ps == 0: A(f"v_max_f32 v{M}, v{M}, v{T}")
        else: A(f"v_add_f32 v{Lr}, v{Lr}, v{T}")
    A(f"v_rcp_f32 v{Lr}, v{Lr}")
    A("s_nop 15")
    for i in range(16): A(f"v_mul_f32 v{Oo+i}, v{Oo+i}, v{Lr}")
    for i in range(8): A(f"v_cvt_pk_bf16_f32 v{OUT+i}, v{Oo+2*i}, v{Oo+2*i+1}")

def acc(w, tt): return ACC + 4 * (w * 4 + tt)

def compute_pre(A):
    A("s_lshl_b32 s62, s41, 1")
    A("s_add_u32 s62, s62, s44")
    A("s_lshl_b32 s47, s40, 1")
    A("s_add_u32 s47, s47, s45")
    A("s_lshl_b32 s48, s62, 5")
    A("s_add_u32 s48, s48, s47")
    A("s_lshl_b32 s65, s48, 7")
    A(f"s_add_u32 s65, s65, {FKV_BASE}")
    A("s_lshl_b32 s64, s48, 13")
    A("s_add_u32 s49, s64, 4096")
    A("s_lshl_b32 s66, s40, 7")
    A("s_add_u32 s66, s66, s62")
    A(f"s_lshl_b32 s67, s66, {O.fsh}")
    A(f"s_add_u32 s67, s67, {FO_BASE}")
    A("s_lshl_b32 s66, s66, 11")
    A(f"s_add_u32 s66, s66, {O_BASE}")
    A("s_mov_b32 s63, 0")
    A("s_mov_b32 s74, 0")
    A("s_mov_b32 s76, -1")
    A("v_lshlrev_b32 v3, 4, v2")
    A("v_lshrrev_b32 v1, 4, v2")
    A("v_xor_b32 v1, v1, v2")
    A("v_and_b32 v1, 1, v1")
    A("v_add_u32 v1, -1, v1")
    A("v_and_b32 v1, 0x3f803f80, v1")
    for i in range(4): A(f"v_mov_b32 v{ONES[0]+i}, v1")
    A("s_cmp_ge_u32 s40, 1")
    A("s_cselect_b32 s56, -1, 0")
    A("s_cselect_b32 s52, 0, 0x40000000")
    A("s_cmp_ge_u32 s40, 2")
    A("s_cselect_b32 s57, -1, 0")
    A("s_cselect_b32 s53, 0, 0x40000000")
    for i in range(4): A(f"v_and_b32 v{ONES[1]+i}, s56, v1")
    for i in range(4): A(f"v_and_b32 v{ONES[2]+i}, s57, v1")
    A("s_add_u32 s68, s52, s64"); A("s_sub_u32 s68, s68, 0x4000")
    A("s_add_u32 s69, s53, s64"); A("s_sub_u32 s69, s69, 0x8000")
    tb_make(A, 0)
    bias_make(A, False)
    A("s_lshl_b32 s58, s44, 2")
    A("v_mov_b32 v0, s58")

def transition_kv(A):
    pairs16 = []; pairs32 = []
    for T in range(2):
        for f in range(2):
            b = KL + 16 * T + 4 * f
            for j in range(2):
                A(f"v_cvt_pk_bf16_f32 v{b+j}, v{acc(2+f,2*T)+2*j}, v{acc(2+f,2*T)+2*j+1}")
                A(f"v_cvt_pk_bf16_f32 v{b+2+j}, v{acc(2+f,2*T+1)+2*j}, v{acc(2+f,2*T+1)+2*j+1}")
                pairs16.append((b + j, b + 2 + j))
    A("s_nop 1")
    for a, b in pairs16: A(f"v_permlane16_swap_b32 v{a}, v{b}")
    for i in (0, 1, 4, 5):
        A(f"buffer_store_dwordx4 {vr(KL+4*i,4)}, v3, s[32:35], s{64 if i < 4 else 49} offen offset:{1024*(i%4)} sc1")
    pairs16 = []
    for T in range(2):
        for f in range(2):
            b = KL + 16 * T + 8 + 4 * f
            tt = 2 * T + f
            for j in range(2):
                A(f"v_cvt_pk_bf16_f32 v{b+j}, v{acc(4,tt)+2*j}, v{acc(4,tt)+2*j+1}")
                A(f"v_cvt_pk_bf16_f32 v{b+2+j}, v{acc(5,tt)+2*j}, v{acc(5,tt)+2*j+1}")
                pairs16.append((b + j, b + 2 + j))
    A("s_nop 1")
    for a, b in pairs16: A(f"v_permlane16_swap_b32 v{a}, v{b}")
    for a, b in pairs16: A(f"v_permlane32_swap_b32 v{a}, v{b}")
    for i in (2, 3, 6, 7):
        A(f"buffer_store_dwordx4 {vr(KL+4*i,4)}, v3, s[32:35], s{64 if i < 4 else 49} offen offset:{1024*(i%4)} sc1")

FINQ = {0: (2, 3, 1, 0), 1: (3, 2, 0, 1)}
def phase2(A, p):
    A(f"s_mov_b32 s56, {QSCALE:#x}")
    A(f"s_mov_b32 s57, {QSCALE:#x}")
    for i in range(16):
        A(f"v_pk_mul_f32 {vr(ACC+2*i,2)}, {vr(ACC+2*i,2)}, s[56:57]")
    pairs = []
    for T in range(2):
        for f in range(2):
            b = QF + 8 * (2 * p + T) + 4 * f
            for j in range(2):
                A(f"v_cvt_pk_bf16_f32 v{b+j}, v{acc(f,2*T)+2*j}, v{acc(f,2*T)+2*j+1}")
                A(f"v_cvt_pk_bf16_f32 v{b+2+j}, v{acc(f,2*T+1)+2*j}, v{acc(f,2*T+1)+2*j+1}")
                pairs.append((b + j, b + 2 + j))
    TT = 8
    A("s_lshl_b32 s58, s44, 13")
    A(f"v_add_u32 v{TT}, s58, v3")
    for a, b in pairs: A(f"v_permlane16_swap_b32 v{a}, v{b}")
    for k in range(4):
        A(f"ds_write_b128 v{TT}, {vr(QF+16*p+4*k,4)} offset:{M_O + p*4096 + k*1024}")
    fl_set(A, 0, F_Q + p * 8, 1, TT + 1)
    stamp(A, 2)
    T = Tiles(A, set())
    K0, K1 = KL, KL + 16
    o0 = ONES[0]
    XAD, LAD, OAD, TMP = 4, 5, 6, 7
    a0, a1, b0, b1 = R1, R1 + 16, R2, R2 + 16
    o1, o2 = ONES[1], ONES[2]
    def seq(*fs):
        def f():
            for g in fs: g()
        return f
    def ld(base, sb, off):
        if off: A(f"s_add_u32 s58, {sb}, {off}")
        for i in range(4):
            A(f"buffer_load_dwordx4 {vr(base+4*i,4)}, v3, s[32:35], {'s58' if off else sb} offen offset:{1024*i} sc1")
    def h_q():
        fl_wait(A, 0, F_Q + (1 - p) * 8, 1, TT + 2)
        for k in range(4):
            A(f"ds_read_b128 {vr(QF+16*(1-p)+4*k,4)}, v{TT} offset:{M_O + (1-p)*4096 + k*1024}")
    def kvflag(block):
        try_flag(A, "s_mov_b32 s58, s65", "s74", TT + 4, block, True)
    kf = lambda: kvflag(False)
    def h_qack():
        A("s_waitcnt lgkmcnt(0)")
        A(f"ds_write_b32 v0, v{TT+1} offset:{FL + F_QACK + p*8}")
    def mk_bias():
        tb_make(A, TT + 2)
        bias_make(A, True)
    def mk_addr():
        A("s_lshl_b32 s58, s44, 13")
        A(f"v_add_u32 v{XAD}, s58, v3")
        A("s_lshl_b32 s58, s44, 9")
        A(f"v_lshlrev_b32 v{LAD}, 2, v2")
        A(f"v_add_u32 v{LAD}, s58, v{LAD}")
        A(f"v_and_b32 v{OAD}, 15, v2")
        A(f"v_lshlrev_b32 v{OAD}, 4, v{OAD}")
        A(f"v_bfe_u32 v{TMP}, v2, 4, 1")
        A(f"v_lshl_add_u32 v{OAD}, v{TMP}, 10, v{OAD}")
        A(f"v_cmp_ne_u32 s[72:73], 0, v{TMP}")
        A(f"v_lshrrev_b32 v{TMP}, 5, v2")
        A(f"v_lshl_add_u32 v{OAD}, v{TMP}, 8, v{OAD}")
    def mk_ones():
        A("s_cmp_ge_u32 s40, 1")
        A("s_cselect_b32 s56, -1, 0")
        A("s_cmp_ge_u32 s40, 2")
        A("s_cselect_b32 s57, -1, 0")
        for i in range(4): A(f"v_and_b32 v{ONES[1]+i}, s56, v{ONES[0]}")
        for i in range(4): A(f"v_and_b32 v{ONES[2]+i}, s57, v{ONES[0]}")
    def rdy_peek():
        A(f"ds_read_b32 v{TT+3}, v0 offset:{FL + F_RDY}")
    def rdy_try(block):
        go = A.newlabel("Lrg"); back = A.newlabel("Lrb")
        if block:
            A("s_cmp_eq_u32 s76, 0")
        else:
            A("s_waitcnt lgkmcnt(0)")
            A(f"v_cmp_ne_u32 vcc, v{TT+1}, v{TT+3}")
            A("s_or_b32 s58, vcc_lo, s76")
            A("s_cmp_eq_u32 s58, 0")
        A(f"s_cbranch_scc1 {go}")
        A.label(back)
        def ool(B):
            nonlocal A
            sv = A; A = B
            B.label(go)
            if block: fl_wait(B, 0, F_RDY, 1, TT + 3)
            ld(a0, "s68", 0); ld(a1, "s68", 4096)
            B("s_mov_b32 s76, -1")
            B(f"s_branch {back}")
            A = sv
        OOL.append(ool)
    def send(q, rnd):
        def f():
            A(f"v_cndmask_b32 v{TMP}, v{LA+4*q}, v{LA+4*q+1}, s[72:73]")
            for i in range(4):
                A(f"ds_write_b128 v{XAD}, {vr(OA+16*q+4*i,4)} offset:{M_O + p*4096 + i*1024}")
            A(f"ds_write_b32 v{LAD}, v{TMP} offset:{M_L + p*256}")
            fl_set(A, 0, F_FULL + p * 8, rnd, 1)
        return f
    def peek(off):
        def f():
            A(f"ds_read_b32 v1, v0 offset:{FL + off}")
        return f
    def check(off, k):
        go = A.newlabel("Lcg"); back = A.newlabel("Lcb")
        A(f"s_add_u32 s59, s60, {k}")
        A("s_waitcnt lgkmcnt(0)")
        A("v_cmp_ne_u32 vcc, s59, v1")
        A(f"s_cbranch_vccnz {go}")
        A.label(back)
        def ool(B):
            B.label(go)
            fl_wait(B, 0, off, k, 1)
            B(f"s_branch {back}")
        OOL.append(ool)
    def recv(qs, rnd):
        def f():
            check(F_FULL + (1 - p) * 8, rnd)
            for i in range(4):
                A(f"ds_read_b128 {vr(OA+16*qs+4*i,4)}, v{XAD} offset:{M_O + (1-p)*4096 + i*1024}")
            A(f"ds_read_b32 v{LA+4*qs}, v{LAD} offset:{M_L + (1-p)*256}")
        return f
    def fin(qf, qs, rnd):
        def f():
            Tn = OA + 16 * qs; Ob = OA + 16 * qf; Lr = LA + 4 * qs + 1; Rc = LA + 4 * qs + 2
            A(f"v_cndmask_b32 v{Lr}, v{LA+4*qf}, v{LA+4*qf+1}, s[72:73]")
            A(f"s_add_u32 s58, s60, {rnd}")
            A(f"v_mov_b32 v1, s58")
            A("s_waitcnt lgkmcnt(0)")
            A(f"ds_write_b32 v0, v1 offset:{FL + F_ACK + p*8}")
            if rnd == 1:
                A(f"ds_write_b32 v0, v1 offset:{FL + F_M1 + p*8}")
            A(f"v_add_f32 v{Lr}, v{Lr}, v{LA+4*qs}")
            A(f"v_rcp_f32 v{Rc}, v{Lr}")
            for i in range(0, 16, 2):
                A(f"v_pk_add_f32 {vr(Ob+i,2)}, {vr(Ob+i,2)}, {vr(Tn+i,2)}")
            for i in range(0, 16, 2):
                A(f"v_pk_mul_f32 {vr(Tn+i,2)}, {vr(Ob+i,2)}, {vr(Rc,2)} op_sel_hi:[1,0]")
            for i in range(8):
                A(f"v_cvt_pk_bf16_f32 v{Tn+i}, v{Tn+2*i}, v{Tn+2*i+1}")
            A(f"s_add_u32 s58, s66, {qf*65536}")
            A(f"buffer_store_dwordx4 {vr(Tn,4)}, v{OAD}, s[32:35], s58 offen sc1")
            A(f"buffer_store_dwordx4 {vr(Tn+4,4)}, v{OAD}, s[32:35], s58 offen offset:512 sc1")
            C = Tn + 8
            A(f"v_add_f32 v{C}, |v{Ob}|, |v{Ob+1}|")
            A(f"v_add_f32 v{C+1}, |v{Ob+2}|, |v{Ob+3}|")
            for i in range(4, 16, 2):
                A(f"v_add_f32 v{C}, v{C}, |v{Ob+i}|")
                A(f"v_add_f32 v{C+1}, v{C+1}, |v{Ob+i+1}|")
            A(f"v_add_f32 v{C}, v{C}, v{C+1}")
            A(f"v_cmp_le_f32 vcc, {f32(2.0**-30):#x}, v{Lr}")
            A(f"s_mov_b64 s[56:57], vcc")
            A(f"v_cmp_ge_f32 vcc, {f32(2.0**30):#x}, v{Lr}")
            A("s_and_b64 s[56:57], s[56:57], vcc")
            A(f"v_cmp_gt_f32 vcc, {f32(2.0**100):#x}, v{C}")
            A("s_and_b64 s[56:57], s[56:57], vcc")
            A("s_cmp_eq_u64 s[56:57], -1")
            if O.force_slow:
                A("s_cmp_eq_u32 s40, 99")
            A(f"s_cselect_b32 s75, 0, {1 << (rnd-1)}")
            A("s_or_b32 s63, s63, s75")
        return f
    qf1, qs1, qf2, qs2 = FINQ[p]
    def of1(block):
        try_flag(A, f"s_add_u32 s58, s67, {qf1*(32<<O.fsh)}", "s75", OA + 16 * qf1, block)
    def h_kvl():
        fl_set(A, 0, F_KVL + p * 8, 1, 1)
    if p == 0:
        e = b0
        local = [(K0, 0, True, o0), (K0, 1, False, o0), (K1, 1, True, o0), (K0, 2, False, o0), (K0, 3, False, o0), (K1, 2, False, o0), (K1, 3, False, o0)]
        tiles = local + [(a0, 3, False, o1), (a1, 3, False, o1), (e, 3, True, o2),
                 (e, 2, False, o2), (a0, 2, False, o1), (a1, 2, False, o1),
                 (a0, 0, False, o1), (a1, 0, False, o1), (b1, 0, False, o2), (b0, 0, True, o2),
                 (a0, 1, False, o1), (a1, 1, False, o1), (b1, 1, True, o2)]
        w = {7: "s_waitcnt vmcnt(8)", 8: "s_waitcnt vmcnt(4)", 9: "s_waitcnt vmcnt(4)", 15: "s_waitcnt vmcnt(6)", 16: "s_waitcnt vmcnt(2)"}
        rt = lambda: rdy_try(False)
        def h6():
            stamp(A, 3)
            kvflag(True); rdy_try(True); ld(e, "s69", 8192 + 4096); mk_ones()
            stamp(A, 4)
        hk = {0: kf, 1: seq(kf, h_q), 2: seq(h_qack, kf, rdy_peek), 3: seq(kf, rt, mk_bias, rdy_peek), 4: seq(kf, rt, rdy_peek),
              5: seq(kf, rt), 6: h6, 8: seq(lambda: ld(b1, "s69", 4096), h_kvl, mk_addr), 10: peek(F_QACK + 8),
              11: seq(lambda: check(F_QACK + 8, 1), send(3, 1)), 12: seq(lambda: ld(b0, "s69", 0), peek(F_FULL + 8)), 13: recv(3, 1), 14: fin(2, 3, 1),
              16: lambda: of1(False), 17: seq(lambda: of1(False), peek(F_ACK + 8)),
              18: seq(lambda: check(F_ACK + 8, 1), send(0, 2), lambda: of1(False)), 19: seq(lambda: of1(False), peek(F_FULL + 8))}
        T.run(tiles, waits=w, hooks=hk)
    else:
        local = [(K0, 2, True, o0), (K0, 3, False, o0), (K1, 3, True, o0)]
        T.run(local, hooks={0: kf, 1: seq(kf, h_q), 2: seq(h_qack, kf)})
        stamp(A, 3)
        kf(); mk_bias(); kvflag(True)
        fl_wait(A, 0, F_QACK + (1 - p) * 8, 1, TT + 2)
        rdy_try(True)
        stamp(A, 4)
        ld(b0, "s69", 0); ld(b1, "s69", 4096)
        h_kvl(); mk_ones(); mk_addr()
        tiles = [(a0, 2, False, o1), (a1, 2, False, o1), (b0, 2, True, o2),
                 (a0, 3, False, o1), (a1, 3, False, o1),
                 (a0, 1, False, o1), (a1, 1, False, o1), (b0, 1, False, o2), (b1, 1, False, o2),
                 (a0, 0, False, o1), (a1, 0, False, o1), (b0, 0, False, o2), (b1, 0, False, o2)]
        w = {0: "s_waitcnt vmcnt(12)", 1: "s_waitcnt vmcnt(8)", 2: "s_waitcnt vmcnt(4)", 4: "s_waitcnt vmcnt(0)"}
        hk = {4: send(2, 1), 5: peek(F_FULL), 6: recv(2, 1), 7: fin(3, 2, 1),
              9: seq(lambda: of1(False), peek(F_ACK)), 10: seq(lambda: check(F_ACK, 1), send(1, 2), lambda: of1(False)),
              11: lambda: of1(False), 12: seq(lambda: of1(False), peek(F_FULL))}
        T.run(tiles, waits=w, hooks=hk)
    stamp(A, 5)
    recv(qs2, 2)()
    of1(True)
    A("s_nop 4")
    fin(qf2, qs2, 2)()
    stamp(A, 6)
    try_flag(A, f"s_add_u32 s58, s67, {qf2*(32<<O.fsh)}", "s75", OA + 16 * qf2, True)
    for rnd in (1, 2):
        qf = (qf1, qf2)[rnd - 1]
        skip = A.newlabel("Lnf")
        A(f"s_bitcmp1_b32 s63, {rnd-1}")
        A(f"s_cbranch_scc0 {skip}")
        A("s_lshl_b32 s68, s40, 2")
        A(f"s_add_u32 s68, s68, {qf}")
        A("s_lshl_b32 s69, s62, 18")
        attn_slow(A, QF + 8 * qf, "s68", "s69", 24)
        o_store(A, 24, qf, 102)
        g_flag(A, f"s_add_u32 s58, s67, {qf*(32<<O.fsh)}", 0, 16)
        A.label(skip)
    stamp(A, 7)

def wo_addr(A, kh_sgpr):
    A("v_lshrrev_b32 v5, 4, v2")
    A("v_bfe_u32 v6, v2, 2, 2")
    A("v_lshrrev_b32 v7, 1, v5")
    A("v_lshlrev_b32 v7, 4, v7")
    A("v_and_b32 v8, 1, v5")
    A("v_lshl_add_u32 v7, v8, 2, v7")
    A("v_add_u32 v7, v7, v6")
    A("v_bfe_u32 v8, v7, 1, 2")
    A("v_lshlrev_b32 v7, 7, v7")
    A("v_lshl_add_u32 v7, v8, 5, v7")
    A("v_and_b32 v6, 3, v2")
    A("v_lshl_add_u32 v7, v6, 3, v7")
    if kh_sgpr:
        A(f"s_lshl_b32 s51, {kh_sgpr}, 16")
        A(f"s_add_u32 s51, s51, {WO_LDS}")
        A("v_add_u32 v10, s51, v7")
    else:
        A(f"v_add_u32 v10, {WO_LDS}, v7")
    for ct in range(1, 4):
        A(f"v_xor_b32 v{10+ct}, {32*ct}, v10")

def wo_ready_wait(A, tmp):
    A(f"v_and_b32 v{tmp}, 3, v2")
    A(f"v_lshlrev_b32 v{tmp}, 2, v{tmp}")
    fl_wait(A, tmp, F_WO, 1, tmp + 1, sleep=1)

def poll_o(A, lab, voff, soff):
    A("s_mov_b32 s54, 0")
    A.label(lab)
    A(f"buffer_load_dwordx2 v[6:7], v{voff}, s[32:35], {soff} offen sc1")
    A("s_add_u32 s54, s54, 1")
    A(f"s_cmp_gt_u32 s54, {POLL_MAX}")
    A(f"s_cbranch_scc1 {lab}g")
    A("s_waitcnt vmcnt(0)")
    A("v_cmp_ne_u64 vcc, s[60:61], v[6:7]")
    A(f"s_cbranch_vccnz {lab}")
    A.label(lab + "g")
    A("s_waitcnt vmcnt(0)")

def out_addr(A, row_sgpr):
    A("v_and_b32 v5, 15, v2")
    A(f"v_add_u32 v5, {row_sgpr}, v5")
    A("v_lshlrev_b32 v5, 11, v5")
    A("v_bfe_u32 v6, v2, 4, 1")
    A("v_lshl_add_u32 v5, v6, 5, v5")
    A("v_lshrrev_b32 v6, 5, v2")
    A("v_lshl_add_u32 v5, v6, 4, v5")
    A("s_lshl_b32 s50, s40, 7")
    A("v_add_u32 v5, s50, v5")

def out_store(A, D, P, nh):
    bits = "sc1" if O.out_sc1 else ""
    for hf in range(nh):
        for cp in range(2):
            b = P + 8 * hf + 4 * cp
            for j in range(2):
                a0 = D + 4 * (hf * 4 + 2 * cp) + 2 * j; a1 = D + 4 * (hf * 4 + 2 * cp + 1) + 2 * j
                A(f"v_cvt_pk_bf16_f32 v{b+j}, v{a0}, v{a0+1}")
                A(f"v_cvt_pk_bf16_f32 v{b+2+j}, v{a1}, v{a1+1}")
    A("s_nop 1")
    for q in range(2 * nh):
        A(f"v_permlane16_swap_b32 v{P+4*q}, v{P+4*q+2}")
        A(f"v_permlane16_swap_b32 v{P+4*q+1}, v{P+4*q+3}")
    A("s_mov_b32 s51, 0x8000")
    for hf in range(nh):
        for cp in range(2):
            A(f"buffer_store_dwordx4 {vr(P+8*hf+4*cp,4)}, v5, s[28:31], {'s51' if hf else '0'} offen offset:{64*cp} {bits}")

def phase3_body(A, tag, rt0, oflag, gate, f_r, done_flag):
    D = 16; WF = [48, 64]; OF = 96
    A("s_lshl_b32 s48, s41, 2")
    A("s_add_u32 s48, s48, s44")
    if rt0: A(f"s_add_u32 s48, s48, {rt0}")
    A("s_lshl_b32 s49, s48, 5")
    A("s_lshl_b32 s50, s45, 4")
    A("s_add_u32 s49, s49, s50")
    A("s_lshl_b32 s49, s49, 11")
    A(f"s_add_u32 s49, s49, {O_BASE}")
    wo_addr(A, "s45")
    A("s_lshl_b32 s52, s48, 5")
    A("s_lshl_b32 s53, s45, 4")
    A("s_add_u32 s52, s52, s53")
    out_addr(A, "s52")
    A("s_lshl_b32 s58, s44, 13")
    A("v_add_u32 v4, s58, v3")
    wo_ready_wait(A, 14)
    def wreads(s, st):
        f = WF[st]; r = []
        for ct in range(4):
            r.append(f"ds_read_b64_tr_b16 {vr(f+4*ct,2)}, v{10+ct} offset:{s*4096}")
            r.append(f"ds_read_b64_tr_b16 {vr(f+4*ct+2,2)}, v{10+ct} offset:{s*4096+1024}")
        return r
    for r in wreads(0, 0): A(r)
    A("v_mov_b32 v14, 0")
    fl_wait(A, 14, oflag, 1, 15, sleep=1)
    stamp(A, 8, True)
    if tag == "h3" and O.hprio: A(f"s_setprio {O.hprio}")
    nl = [0]
    def oload():
        k = nl[0]
        if k >= 32: return
        A(f"buffer_load_dwordx4 {vr(OF+4*k,4)}, v3, s[32:35], s49 offen offset:{(k%4)*1024} {O.obits}")
        if k % 4 == 3: A("s_add_u32 s49, s49, 4096")
        nl[0] += 1
    for k in range(O.pd): oload()
    for s in range(16):
        st = s % 2
        R = wreads(s + 1, 1 - st) if s < 15 else []
        issued = 0
        for i in range(8):
            ct, hf = i // 2, i % 2
            w = []
            if i < 2: w.append(f"vmcnt({nl[0] - 1 - (2*s+hf)})")
            if hf == 0: w.append(f"lgkmcnt({6 - 2*ct + issued})")
            if w: A("s_waitcnt " + " ".join(w))
            mfma16(A, D + 4 * (hf * 4 + ct), WF[st] + 4 * ct, OF + 4 * (2 * s + hf), "0" if s == 0 else None)
            if R: A(R[i]); issued += 1
            if i in (2, 5): oload()
    stamp(A, 9)
    A("v_and_b32 v14, 1, v2")
    A("v_lshl_add_u32 v14, v14, 3, v0")
    fl_wait(A, 14, gate[0], gate[1], 15)
    A("s_cmp_eq_u32 s45, 1")
    A(f"s_cbranch_scc1 L_{tag}_p1")
    for p in range(2):
        if p: A.label(f"L_{tag}_p1")
        for i in range(4):
            A(f"ds_write_b128 v4, {vr(D+16*(1-p)+4*i,4)} offset:{M_O + p*4096 + 1024*i}")
        fl_set(A, 0, f_r + p * 8, 1, 14)
        fl_wait(A, 0, f_r + (1 - p) * 8, 1, 15)
        for i in range(4):
            A(f"ds_read_b128 {vr(OF+4*i,4)}, v4 offset:{M_O + (1-p)*4096 + 1024*i}")
        A("s_waitcnt lgkmcnt(0)")
        if done_flag is not None:
            A(f"ds_write_b32 v0, v14 offset:{FL + done_flag + p*8}")
        for i in range(0, 16, 2):
            A(f"v_pk_add_f32 {vr(D+16*p+i,2)}, {vr(D+16*p+i,2)}, {vr(OF+i,2)}")
        out_store(A, D + 16 * p, 64, 1)
        A("s_branch L_fin")

def poll_g(A, lab, voff, soff):
    A("s_mov_b32 s54, 0")
    A.label(lab)
    A(f"buffer_load_dwordx2 v[6:7], v{voff}, s[32:35], {soff} offen sc1")
    A("s_add_u32 s54, s54, 1")
    A(f"s_cmp_gt_u32 s54, {POLL_MAX}")
    A(f"s_cbranch_scc1 {lab}g")
    A("s_waitcnt vmcnt(0)")
    A("v_cmp_ne_u64 vcc, s[60:61], v[6:7]")
    A(f"s_cbranch_vccz {lab}g")
    if O.psleep: A(f"s_sleep {O.psleep}")
    A(f"s_branch {lab}")
    A.label(lab + "g")

def phase3_compute(A):
    A("s_cmp_lg_u32 s42, 0")
    A("s_cbranch_scc1 L_np2")
    A(f"v_lshlrev_b32 v4, {O.fsh}, v2")
    A(f"s_lshl_b32 s50, s41, {7+O.fsh}")
    A(f"s_add_u32 s50, s50, {FO_BASE}")
    poll_g(A, "L_po2", 4, "s50")
    A("v_mov_b32 v14, 0")
    fl_set(A, 14, F_O2, 1, 15)
    A.label("L_np2")
    phase3_body(A, "c3", 0, F_O2, (F_HD, 1), F_R, None)

def helper_tail(A):
    A("s_sub_u32 s43, s42, 4")
    A("s_and_b32 s44, s43, 1")
    A("s_lshr_b32 s45, s43, 1")
    A("v_lshlrev_b32 v3, 4, v2")
    A("v_and_b32 v14, 3, v2")
    A("v_lshlrev_b32 v14, 2, v14")
    def wo_rest():
        if not O.wo_early: fl_wait(A, 14, F_KVL, 1, 15, sleep=1)
        A("s_mul_i32 s51, s43, 22528")
        A("s_mul_i32 s52, s43, 360448")
        wo_issue(A, list(range(22)), True)
        left = O.pa_left + [127]
        per = (len(left) + 3) // 4
        first = 128 - 4 * per
        A(f"s_mul_i32 s51, s43, {per*1024}")
        A(f"s_mul_i32 s52, s43, {per*16384}")
        wo_issue(A, list(range(first, first + per)), True)
    if O.wo_early: wo_rest()
    A("s_cmp_lg_u32 s42, 7")
    A("s_cbranch_scc1 L_nkp")
    A("s_lshl_b32 s46, s41, 6")
    A("s_lshl_b32 s47, s40, 1")
    A("s_add_u32 s46, s46, s47")
    A("s_lshl_b32 s46, s46, 7")
    A(f"s_add_u32 s46, s46, {FKV_BASE - 512}")
    A("v_bfe_u32 v4, v2, 2, 1")
    A("v_xor_b32 v4, 1, v4")
    A("s_cmp_ge_u32 s40, 2")
    A("s_cselect_b32 s47, 0, 1")
    A("v_or_b32 v4, s47, v4")
    A("v_lshlrev_b32 v4, 1, v4")
    A("v_and_b32 v5, 1, v2")
    A("v_add_u32 v4, v4, v5")
    A("v_bfe_u32 v5, v2, 1, 1")
    A("v_lshl_add_u32 v4, v5, 5, v4")
    A("v_lshlrev_b32 v4, 7, v4")
    A("s_cmp_eq_u32 s40, 0")
    A("s_cbranch_scc1 L_pkg")
    if O.lflag:
        A("s_add_u32 s47, s46, 0x40000")
        A("s_mov_b32 s54, 0")
        A.label("L_pl")
        A("buffer_load_dwordx2 v[6:7], v4, s[32:35], s47 offen sc1")
        A("s_add_u32 s54, s54, 1")
        A("s_waitcnt vmcnt(0)")
        A("v_cmp_ne_u64 vcc, s[60:61], v[6:7]")
        A("s_cbranch_vccz L_pkg")
        A(f"s_cmp_lt_u32 s54, {O.lflag}")
        A("s_cbranch_scc1 L_pl")
    poll_g(A, "L_pk", 4, "s46")
    fl_set(A, 14, F_RDY, 1, 15)
    A.label("L_nkp")
    if not O.wo_early: wo_rest()
    A("s_lshl_b32 s58, s43, 2")
    A("v_mov_b32 v16, s58")
    A("s_waitcnt vmcnt(0)")
    fl_set(A, 16, F_WO, 1, 15)
    A("s_lshl_b32 s58, s44, 2")
    A("v_mov_b32 v0, s58")
    A("s_cmp_lg_u32 s42, 7")
    A("s_cbranch_scc1 L_np1")
    fl_wait(A, 14, F_M1, 1, 15, sleep=1)
    A(f"v_lshlrev_b32 v4, {O.fsh}, v2")
    A(f"s_lshl_b32 s50, s41, {7+O.fsh}")
    A(f"s_add_u32 s50, s50, {FO_BASE + (64<<O.fsh)}")
    poll_g(A, "L_po1", 4, "s50")
    A("v_mov_b32 v14, 0")
    fl_set(A, 14, F_O1, 1, 15)
    A.label("L_np1")
    phase3_body(A, "h3", 2, F_O1, (F_ACK, 2), F_HR, F_HD)

def g_reads(addr, ks, st, ws):
    f = p1.FR[st]
    X = [f"ds_read_b128 {vr(f+4*tt,4)}, v{addr+ks} offset:{tt*2048}" for tt in range(4)]
    W = []
    for w in ws:
        part, ft = w // 2, w % 2
        for sec in range(2):
            W.append(f"ds_read_b64_tr_b16 {vr(f+16+4*w+2*sec,2)}, v{addr+2+ft} offset:{part*8192+ks*4096+sec*512}")
    return [X[0], W[0], W[1], X[1], X[2], X[3]] + W[2:]

def g_step(A, st, ws, nprev, pre, R, first=0, extra=None, valu=None, nv=0):
    issued = 0; done = 0
    ms = [(k, w, tt) for k, w in enumerate(ws) for tt in range(4)]
    per = -(-len(R) // max(1, len(ms) - first))
    for i, (k, w, tt) in enumerate(ms):
        n = pre + max([1, 4, 5, 6][tt], 3 if k == 0 else 6 + 2 * k) if nprev else 0
        if n > done:
            cnt = (nprev - n) + issued
            A(f"s_waitcnt lgkmcnt({min(cnt,15)})")
            done = n if cnt <= 15 else max(done, nprev - (15 - issued))
            assert done >= n
        p1.mf(A, w * 4 + tt, st)
        if extra and i in extra:
            for e in extra[i]: A(e)
        if i >= first:
            for _ in range(per):
                if issued < len(R): A(R[issued]); issued += 1
        if valu:
            for _ in range(nv):
                if valu: A(valu.pop(0))
    assert issued == len(R), (issued, len(R))

def kv_pack_ops():
    ops = []
    pairs = []
    for T in range(2):
        for f in range(2):
            b = KL + 16 * T + 4 * f
            for j in range(2):
                ops.append(f"v_cvt_pk_bf16_f32 v{b+j}, v{acc(2+f,2*T)+2*j}, v{acc(2+f,2*T)+2*j+1}")
                ops.append(f"v_cvt_pk_bf16_f32 v{b+2+j}, v{acc(2+f,2*T+1)+2*j}, v{acc(2+f,2*T+1)+2*j+1}")
                pairs.append((b + j, b + 2 + j))
    ops += [f"v_permlane16_swap_b32 v{a}, v{b}" for a, b in pairs]
    st = lambda i: f"buffer_store_dwordx4 {vr(KL+4*i,4)}, v3, s[32:35], s{64 if i < 4 else 49} offen offset:{1024*(i%4)} sc1"
    kst = [st(i) for i in (0, 1, 4, 5)]
    pairs = []; vc = []
    for T in range(2):
        for f in range(2):
            b = KL + 16 * T + 8 + 4 * f
            tt = 2 * T + f
            for j in range(2):
                vc.append(f"v_cvt_pk_bf16_f32 v{b+j}, v{acc(4,tt)+2*j}, v{acc(4,tt)+2*j+1}")
                vc.append(f"v_cvt_pk_bf16_f32 v{b+2+j}, v{acc(5,tt)+2*j}, v{acc(5,tt)+2*j+1}")
                pairs.append((b + j, b + 2 + j))
    for i in range(16):
        ops.append(vc[i])
        if i % 4 == 3: ops.append(kst[i // 4])
    ops += [f"v_permlane16_swap_b32 v{a}, v{b}" for a, b in pairs]
    vst = [st(i) for i in (2, 3, 6, 7)]
    for i, (a, b) in enumerate(pairs):
        ops.append(f"v_permlane32_swap_b32 v{a}, v{b}")
        if i % 2 == 1: ops.append(vst[i // 2])
    return ops

def compute_p1(A):
    A("s_mov_b32 s47, 0")
    A("s_mov_b32 s50, 13")
    lp = A.newlabel("Lmm")
    A.label(lp)
    A("s_waitcnt lgkmcnt(0)")
    p1.step(A, 1, p1.reads(0, 0), 4, extra={3: ["s_barrier"]})
    upd = [f"s_add_u32 s47, s47, {SLOT}", f"s_cmp_ge_u32 s47, {3*SLOT}", "s_cselect_b32 s47, 0, s47"]
    ex = {18: upd}
    for i in range(4):
        ex[19 + i] = [f"v_add_u32 v{p1.XA+i}, s47, v{p1.XA0+i}"]
    ex[23] = ["s_sub_u32 s50, s50, 1", "s_cmp_lg_u32 s50, 0"]
    p1.step(A, 0, p1.reads(1, 1), 0, extra=ex, pre_done=0)
    A(f"s_cbranch_scc1 {lp}")
    A("s_waitcnt lgkmcnt(0)")
    AD = {13: p1.XA, 14: 204, 15: p1.XA0}
    KV = [2, 3, 4, 5]; Q = [0, 1]; ALL = [0, 1, 2, 3, 4, 5]
    ex = {3: ["s_barrier", f"v_mov_b32 v1, {CTL1}", "ds_read_b64 v[200:201], v1"]}
    for i in range(4): ex[18 + i] = [f"v_add_u32 v{204+i}, {2*SLOT}, v{p1.XA0+i}"]
    g_step(A, 1, ALL, 0, 0, g_reads(AD[13], 0, 0, KV), first=4, extra=ex)
    g_step(A, 0, KV, 13, 1, g_reads(AD[13], 1, 1, KV))
    g_step(A, 1, KV, 12, 0, g_reads(AD[14], 0, 0, KV), first=2, extra={1: ["s_barrier"]})
    g_step(A, 0, KV, 12, 0, g_reads(AD[14], 1, 1, KV))
    g_step(A, 1, KV, 12, 0, g_reads(AD[15], 0, 0, KV), first=2, extra={1: ["s_barrier"]})
    g_step(A, 0, KV, 12, 0, g_reads(AD[15], 1, 1, KV))
    g_step(A, 1, KV, 12, 0, g_reads(AD[13], 0, 0, Q))
    take_ctl1(A, 200)
    stamp(A, 1, True)
    ops = kv_pack_ops()
    seqq = [(13, 0), (13, 1), (14, 0), (14, 1), (15, 0), (15, 1)]
    for n, (c, ks) in enumerate(seqq):
        R = g_reads(AD[seqq[n+1][0]], seqq[n+1][1], (n + 1) % 2, Q) if n < 5 else []
        ex = {5: ["s_barrier"]} if n == 5 else None
        g_step(A, n % 2, Q, 8, 0, R, valu=ops, nv=O.nv, extra=ex)
    for o in ops: A(o)
    A("s_nop 7")

def main(out):
    A = Asm()
    name = "standalone__sliding_block__prompt_kernel"
    A.raw(HEADER_COMMENT.rstrip())
    A.raw(f"; @launch grid=(256,1,1) block=(512,1,1) lds=163840")
    A.raw('.amdgcn_target "amdgcn-amd-amdhsa--gfx950"')
    A.raw(".text")
    kernel_begin(A, name)
    prologue(A)
    A("s_cmp_eq_u32 s42, 4")
    A("s_cbranch_scc1 L_xl")
    A("s_cmp_eq_u32 s42, 7")
    A("s_cbranch_scc1 L_aux")
    A("s_cmp_ge_u32 s42, 5")
    A("s_cbranch_scc1 L_wl")
    p1.compute_setup(A)
    compute_pre(A)
    srds(A, ["out", "ws"])
    compute_p1(A)
    A("s_cmp_eq_u32 s45, 1")
    A("s_cbranch_scc1 L_p1")
    phase2(A, 0)
    A("s_branch L_p3")
    A.label("L_p1")
    phase2(A, 1)
    A.label("L_p3")
    phase3_compute(A)
    for f in OOL: f(A)
    A.label("L_xl")
    xloader(A)
    A("s_branch L_ht")
    A.label("L_wl")
    wloader(A)
    A("s_branch L_ht")
    A.label("L_aux")
    aux(A)
    if O.stamps == 2:
        A("s_lshl_b32 s46, s2, 7")
        A(f"s_add_u32 s46, s46, {ST_BASE + 0x40000}")
        A("v_mov_b32 v3, 0")
        A("v_mov_b32 v39, s80")
        for i in range(18):
            A(f"buffer_store_dword v{39+i}, v3, s[32:35], s46 offen offset:{4*i}")
    A.label("L_ht")
    helper_tail(A)
    A.label("L_fin")
    if O.probe:
        i, j = O.probe
        A("s_cmp_ge_u32 s42, 4")
        A("s_cbranch_scc1 L_end")
        A("s_waitcnt vmcnt(0)")
        stamp(A, 10, True)
        A(f"s_sub_u32 s46, s{80+2*j}, s{80+2*i}")
        A("s_add_u32 s46, s46, s100")
        A.label("L_spin")
        A("s_memrealtime s[48:49]")
        A("s_waitcnt lgkmcnt(0)")
        A("s_sub_u32 s50, s48, s46")
        A("s_cmp_lt_i32 s50, 0")
        A("s_cbranch_scc1 L_spin")
    if O.stamps:
        A("s_waitcnt vmcnt(0)")
        stamp(A, 10, True)
        A("s_lshl_b32 s46, s2, 3")
        A("s_add_u32 s46, s46, s42")
        A("s_lshl_b32 s46, s46, 6")
        A(f"s_add_u32 s46, s46, {ST_BASE}")
        A("v_mov_b32 v3, 0")
        A("s_mov_b64 exec, 1")
        for i in range(11):
            A(f"v_mov_b32 v4, s{80+2*i}")
            A(f"buffer_store_dword v4, v3, s[32:35], s46 offen offset:{4*i}")
    A.label("L_end")
    A("s_endpgm")
    A.raw('.section .rodata,"a"')
    kernel_desc(A, name, 256, 102, 256)
    open(out, "w").write(A.text())

if __name__ == "__main__":
    for a in sys.argv[2:]:
        k, v = a.split("=")
        setattr(O, k, eval(v))
    main(sys.argv[1])
```
